```python
import torch

def _softmax(x, axis=-1):
    return torch.softmax(x, dim=axis)
def _gelu(x):
    return torch.nn.functional.gelu(x, approximate="tanh")
def _silu(x):
    return torch.nn.functional.silu(x)
def _sigmoid(x):
    return torch.sigmoid(x)
def _layernorm(x, axis=-1, eps=1e-5):
    m = x.mean(dim=axis, keepdim=True)
    v = x.var(dim=axis, keepdim=True, unbiased=False)
    return (x - m) / torch.sqrt(v + eps)
def _scatter_add(tgt, idx, src, axis=0):
    return tgt.clone().index_add_(axis, idx, src)
def _segment_sum(src, seg, n):
    out = torch.zeros((n,) + src.shape[1:], dtype=src.dtype)
    return out.index_add_(0, seg, src)
def _pad(x, pw):
    flat = tuple(v for pair in reversed(pw) for v in pair)
    return torch.nn.functional.pad(x, flat)

kernel_name = 'recurrent_scan__spectral_fnet__dense_activation_silu__prompt'

def setup_inputs():

    _w = (lambda a: (lambda t: t.to(torch.bfloat16) if t.is_floating_point() else t)(torch.as_tensor(a)))
    def _A_setup():
        B, S, D = 1, 2048, 640
        ns = torch.arange(S)[:, None] * torch.arange(S)[None, :]
        nd = torch.arange(D)[:, None] * torch.arange(D)[None, :]
        Ws_re = torch.cos(-2.0 * torch.pi * ns / S).to(float)
        Ws_im = torch.sin(-2.0 * torch.pi * ns / S).to(float)
        Wd_re = torch.cos(-2.0 * torch.pi * nd / D).to(float)
        Wd_im = torch.sin(-2.0 * torch.pi * nd / D).to(float)
        return {
            "x": _w((lambda *s: torch.randn(*s, dtype=torch.bfloat16) * 0.05)(B, S, D)),
            "dft_seq_re": _w(Ws_re),
            "dft_seq_im": _w(Ws_im),
            "dft_hid_re": _w(Wd_re),
            "dft_hid_im": _w(Wd_im),
        }
    _A_in = _A_setup()

    def _B_setup():
        B, S, D, F = 1, 2048, 640, 1536
        return {
            "x": _w((lambda *s: torch.randn(*s, dtype=torch.bfloat16) * 0.05)(B, S, D)),
            "w1": _w((lambda *s: torch.randn(*s, dtype=torch.bfloat16) * 0.2)(D, F) * (D ** -0.5)),
            "w2": _w((lambda *s: torch.randn(*s, dtype=torch.bfloat16) * 0.05)(F, D) * (F ** -0.5)),
        }
    _B_in = _B_setup()

    return {
        "A_x": _A_in["x"],
        "A_dft_seq_re": _A_in["dft_seq_re"],
        "A_dft_seq_im": _A_in["dft_seq_im"],
        "A_dft_hid_re": _A_in["dft_hid_re"],
        "A_dft_hid_im": _A_in["dft_hid_im"],
        "B_x": _B_in["x"],
        "B_w1": _B_in["w1"],
        "B_w2": _B_in["w2"],
    }

def reference(A_x, A_dft_seq_re, A_dft_seq_im, A_dft_hid_re, A_dft_hid_im, B_x, B_w1, B_w2):
    def _A_ref(x, dft_seq_re, dft_seq_im, dft_hid_re, dft_hid_im):
        a = torch.einsum("bsd,ed->bse", x, dft_hid_re)
        b = torch.einsum("bsd,ed->bse", x, dft_hid_im)
        y = torch.einsum("ts,bse->bte", dft_seq_re, a) - torch.einsum("ts,bse->bte", dft_seq_im, b)
        return y

    def _B_ref(x, w1, w2):
        h = torch.einsum("bsd,df->bsf", x, w1)
        h = _silu(h)
        out = torch.einsum("bsf,fd->bsd", h, w2)
        return out

    x = A_x
    xn = _layernorm(x, axis=-1)
    s = _A_ref(xn, A_dft_seq_re, A_dft_seq_im, A_dft_hid_re, A_dft_hid_im)
    g = _silu(_B_ref(xn, B_w1, B_w2))
    return x + s * g
```

```python
class A:
    def __init__(s):
        s.L = []
    def e(s, *lines):
        for x in lines:
            s.L.append(x)
    def c(s, txt):
        s.L.append("; " + txt)
    def lab(s, name):
        s.L.append(name + ":")
    def text(s):
        return "\n".join(s.L) + "\n"

def vr(a, n=1):
    return f"v{a}" if n == 1 else f"v[{a}:{a+n-1}]"
def ar(a, n=1):
    return f"a{a}" if n == 1 else f"a[{a}:{a+n-1}]"
def sr(a, n=1):
    return f"s{a}" if n == 1 else f"s[{a}:{a+n-1}]"

def mfma(d, a, b, c=None, aa=False):
    c = d if c is None else c
    A_ = ar(a, 4) if aa else vr(a, 4)
    cs = "0" if c == 0 and False else vr(c, 4)
    return f"v_mfma_f32_16x16x32_bf16 {vr(d,4)}, {A_}, {vr(b,4)}, {cs}"
def mfma0(d, a, b, aa=False):
    A_ = ar(a, 4) if aa else vr(a, 4)
    return f"v_mfma_f32_16x16x32_bf16 {vr(d,4)}, {A_}, {vr(b,4)}, 0"

def interleave(main, fill, start=0, per=1, tail=True):
    out = []
    fi = 0
    for i, m in enumerate(main):
        out.append(m)
        if i >= start:
            for _ in range(per):
                if fi < len(fill):
                    out += fill[fi]; fi += 1
    while fi < len(fill):
        out += fill[fi]; fi += 1
    return out

def slots_merge(main, plan):
    out = []
    for i, m in enumerate(main):
        out.append(m)
        out += plan.get(i, [])
    return out

import struct
def f2u(f):
    return struct.unpack("<I", struct.pack("<f", f))[0]
def fhex(f):
    return "0x%08x" % f2u(f)
```

```python
import sys
from asmlib import *
KN = "recurrent_scan__spectral_fnet__dense_activation_silu__prompt"
LOG2E = 1.4426950408889634
LN2 = 0.6931471805599453
H_OFF = 0; H_SZ = 32*48*4*1024
U_OFF = 0x600000; U_SZ = 32*64*80*16
X_SZ = 2048*1280; W1_SZ = 640*3072; WD_SZ = 640*1280; W2_SZ = 1536*1280
SRD3 = "0x00020000"

HEADER = open("cdna_kernels/%s.s.ref" % KN).read().split("; Override launch geometry")[0]

def stats_code(a, S, Q, T, outs):
    e = a.e
    bp = T + 11
    for mt in range(2):
        t = T + mt
        e(f"v_cndmask_b32 v{t}, v{Q[mt]}, v{Q[mt]+1}, s[50:51]")
        e(f"v_cndmask_b32 v{t}, v{t}, v{Q[mt]+2}, s[52:53]")
        e(f"v_cndmask_b32 v{t}, v{t}, v{Q[mt]+3}, s[54:55]")
    for mt in range(2):
        e(f"ds_bpermute_b32 v{T+2+mt}, v{bp}, v{T+mt}")
    e("s_waitcnt lgkmcnt(0)")
    inv = fhex(1.0/640.0)
    for mt in range(2):
        sq = T+2+mt; mean = T+4+mt; m_b, rstd = outs[mt]; t = T+6+mt
        e(f"v_mul_f32 v{mean}, {inv}, v{S[mt]}")
        e(f"v_mul_f32 v{sq}, {inv}, v{sq}")
        e(f"v_fma_f32 v{sq}, -v{mean}, v{mean}, v{sq}")
        e(f"v_max_f32 v{sq}, 0, v{sq}")
        e(f"v_cvt_pk_bf16_f32 v{t}, v{mean}, v{sq}")
        e(f"v_lshlrev_b32 v{m_b}, 16, v{t}")
        e(f"v_and_b32 v{t}, 0xffff0000, v{t}")
        e(f"v_add_f32 v{t}, {fhex(1e-5)}, v{t}")
        e(f"v_cvt_pk_bf16_f32 v{t}, v{t}, v{t}")
        e(f"v_and_b32 v{t}, 0xffff0000, v{t}")
        e(f"v_sqrt_f32 v{t}, v{t}")
        e("s_nop 0")
        e(f"v_cvt_pk_bf16_f32 v{t}, v{t}, v{t}")
        e(f"v_and_b32 v{t}, 0xffff0000, v{t}")
        e(f"v_rcp_f32 v{rstd}, v{t}")
    e("s_nop 0")

def lane_masks(a, T):
    e = a.e
    e(f"v_and_b32 v{T}, 3, v0")
    e(f"v_cmp_eq_u32 s[50:51], 1, v{T}")
    e(f"v_cmp_eq_u32 s[52:53], 2, v{T}")
    e(f"v_cmp_eq_u32 s[54:55], 3, v{T}")
    e(f"v_and_b32 v{T}, 15, v0")
    e(f"v_lshrrev_b32 v{T+11}, 2, v{T}")
    e(f"v_lshlrev_b32 v{T+11}, 6, v{T+11}")
    e(f"v_lshl_add_u32 v{T+11}, v{T}, 2, v{T+11}")

def k1_loop(a, name, slot, mf0, mf1, rd1, rd0, addr_regs, dma_groups, wsz, nd, soffw_inc):
    e = a.e
    e(f"s_mov_b32 s27, 0", f"s_mov_b32 s64, {slot}")
    e(".p2align 5")
    a.lab(f"{name}_loop")
    pre = [
        "s_cmp_lt_u32 s27, 6",
        f"s_cselect_b32 s6, {X_SZ}, 0",
        f"s_cselect_b32 s10, {wsz}, 0",
        "s_and_b32 s33, s27, 3",
        f"s_mul_i32 s30, s33, {slot}",
        "s_cmp_eq_u32 s33, 3",
        f"s_cselect_b32 s32, {-3*slot}, s64",
    ]
    upd = [[f"v_add_u32 v{r}, s32, v{r}"] for r in addr_regs]
    n = len(mf0)
    plan = {}
    for i, r in enumerate(rd1):
        plan.setdefault(i, []).append(r)
    for i, p in enumerate(pre):
        plan.setdefault(i, []).append(p)
    k = len(rd1)
    idx = k
    ui = 0
    while ui < len(upd):
        j = min(idx, n-1)
        for _ in range(3):
            if ui < len(upd):
                plan.setdefault(j, []).extend(upd[ui]); ui += 1
        idx += 1
    e(*slots_merge(mf0, plan))
    e(f"s_waitcnt vmcnt({2*nd}) lgkmcnt(0)")
    e("s_barrier")
    plan = {}
    for i, r in enumerate(rd0):
        plan.setdefault(i, []).append(r)
    ng = len(dma_groups)
    for gi, g in enumerate(dma_groups):
        j = 1 + (gi * (n-3)) // ng
        plan.setdefault(j, []).extend(g)
    plan.setdefault(n-2, []).extend(["s_add_u32 s28, s28, 128"] + ([f"s_add_u32 s29, s29, {soffw_inc}"] if soffw_inc else []) + ["s_add_u32 s27, s27, 1"])
    plan.setdefault(n-1, []).extend(["s_cmp_lt_u32 s27, 10"])
    e(*slots_merge(mf1, plan))
    e("s_waitcnt lgkmcnt(0)")
    e(f"s_cbranch_scc1 {name}_loop")

def gen_k1(a):
    e = a.e
    e("s_cmp_ge_u32 s2, 256", "s_cbranch_scc1 K1_end")
    e("s_load_dwordx2 s[4:5], s[0:1], 0")
    e("s_load_dwordx4 s[36:39], s[0:1], 24")
    e("s_load_dwordx2 s[40:41], s[0:1], 48")
    e("s_load_dwordx2 s[12:13], s[0:1], 80")
    e("s_load_dwordx4 s[44:47], s[0:1], 8")
    e("v_lshrrev_b32 v1, 6, v0", "v_and_b32 v0, 63, v0")
    e("v_readfirstlane_b32 s24, v1")
    e("s_and_b32 s48, s2, 7", "s_lshr_b32 s49, s2, 3", "s_lshr_b32 s56, s48, 1", "s_lshl_b32 s56, s56, 2",
      "s_and_b32 s57, s49, 3", "s_add_u32 s25, s56, s57", "s_lshr_b32 s58, s49, 2", "s_and_b32 s59, s48, 1")
    e("v_and_b32 v1, 15, v0", "v_lshrrev_b32 v2, 4, v0", "v_lshrrev_b32 v3, 3, v0", "v_and_b32 v4, 7, v0")
    e(f"s_mov_b32 s6, {X_SZ}", f"s_mov_b32 s7, {SRD3}", f"s_mov_b32 s11, {SRD3}", f"s_mov_b32 s15, {SRD3}")
    e("s_lshl_b32 s60, s25, 2", "s_add_u32 s60, s60, s24", "s_mul_i32 s61, s60, 1280", "s_lshl_b32 s34, s24, 12")
    e("s_cmp_ge_u32 s58, 6", "s_cbranch_scc1 K1_dft")
    XV, WV, WA, XA0, XA1 = 8, 12, 16, 24, 25
    ACC, CS, SUM, SQ, ONES = 32, 96, 104, 112, 120
    A0, B0, A1, B1 = 124, 156, 164, 196
    T = 204
    e("s_mul_i32 s26, s59, 6", "s_add_u32 s26, s26, s58")
    e("v_xor_b32 v5, v4, v2", "v_lshlrev_b32 v5, 4, v5")
    e("v_mov_b32 v7, 81920", "v_mul_u32_u24 v6, v7, v3")
    e("v_add3_u32 v6, v6, v5, s61")
    e(f"v_mov_b32 v{XV}, v6")
    e(f"v_xor_b32 v7, 64, v6")
    e(f"v_add_u32 v{XV+1}, {8*81920-1024}, v7")
    e(f"v_add_u32 v{XV+2}, {16*81920-2048}, v6")
    e(f"v_add_u32 v{XV+3}, {24*81920-3072}, v7")
    e("s_lshl_b32 s62, s24, 4", "v_add_u32 v5, s62, v2", "v_mul_u32_u24 v5, 3072, v5")
    e("v_lshlrev_b32 v6, 1, v2", "v_xor_b32 v6, v6, v1", "v_lshlrev_b32 v6, 4, v6")
    e("s_lshl_b32 s62, s26, 8", "v_add3_u32 v5, v5, v6, s62")
    e(f"v_mov_b32 v{WV}, v5", "v_xor_b32 v6, 128, v5")
    e(f"v_add_u32 v{WV+1}, {8*3072-1024}, v6")
    e(f"v_add_u32 v{WV+2}, {4*3072-2048}, v5")
    e(f"v_add_u32 v{WV+3}, {12*3072-3072}, v6")
    e("s_waitcnt lgkmcnt(0)")
    e("s_mov_b32 s8, s40", "s_mov_b32 s9, s41", f"s_mov_b32 s10, {W1_SZ}")
    def g1_dma(m0x, m0w):
        g = []
        g.append([f"s_add_u32 m0, {m0x[0]}, {m0x[1]}", f"buffer_load_dwordx4 v{XV}, s[4:7], s28 offen lds"])
        for j in range(1, 4):
            g.append([f"buffer_load_dwordx4 v{XV+j}, s[4:7], s28 offen offset:{1024*j} lds"])
        g.append([f"s_add_u32 m0, {m0w[0]}, {m0w[1]}", f"buffer_load_dwordx4 v{WV}, s[8:11], s29 offen lds"])
        for j in range(1, 4):
            g.append([f"buffer_load_dwordx4 v{WV+j}, s[8:11], s29 offen offset:{1024*j} lds"])
        return g
    e("s_mov_b32 s28, 0", "s_mov_b32 s29, 0", "s_add_u32 s35, s34, 16384")
    for st in range(4):
        for g in g1_dma(("s34", st*32768), ("s35", st*32768)):
            if len(g) == 2: e(g[0], "s_nop 0", g[1])
            else: e(*g)
        e("s_add_u32 s28, s28, 128", "s_add_u32 s29, s29, 196608")
    e(f"v_lshrrev_b32 v5, 1, v1", "v_xor_b32 v5, v5, v2", "v_lshlrev_b32 v5, 4, v5")
    e(f"v_lshl_add_u32 v5, v1, 7, v5", f"v_add_u32 v{XA0}, s34, v5", f"v_xor_b32 v{XA1}, 64, v{XA0}")
    e("v_lshrrev_b32 v5, 2, v1", "v_and_b32 v6, 1, v2", "v_lshl_add_u32 v5, v6, 2, v5")
    e("v_lshrrev_b32 v6, 1, v2", "v_lshl_add_u32 v6, v6, 4, v5")
    e("v_lshlrev_b32 v6, 8, v6", "v_and_b32 v7, 3, v1", "v_lshl_add_u32 v6, v7, 3, v6", "v_add_u32 v6, 16384, v6")
    for t in range(8):
        e("s_lshl_b32 s62, s24, 1", f"s_add_u32 s62, s62, {t}", "s_and_b32 s62, s62, 7",
          "v_xor_b32 v7, s62, v5", f"v_lshl_add_u32 v{WA+t}, v7, 5, v6")
    for r in range(ACC, ONES): e(f"v_mov_b32 v{r}, 0")
    for r in range(ONES, ONES+4): e(f"v_mov_b32 v{r}, 0x3f803f80")
    lane_masks(a, T)
    def g1_mf(Ab, Bb):
        m = []
        for t in range(8):
            for mt in range(2):
                m.append(mfma(ACC + (t*2+mt)*4, Ab + 4*t, Bb + 4*mt))
            if t < 2: m.append(mfma(CS + 4*t, Ab + 4*t, ONES))
            if t in (2, 3): m.append(mfma(SUM + 4*(t-2), ONES, Bb + 4*(t-2)))
            if t in (4, 5): m.append(mfma(SQ + 4*(t-4), Bb + 4*(t-4), Bb + 4*(t-4)))
        return m
    def g1_rd(Ab, Bb, xa, kk):
        r = []
        for mt in range(2): r.append(f"ds_read_b128 {vr(Bb+4*mt,4)}, v{xa} offset:{2048*mt}")
        for t in range(8):
            for hf in range(2):
                r.append(f"ds_read_b64_tr_b16 {vr(Ab+4*t+2*hf,2)}, v{WA+t} offset:{kk*8192+hf*2048}")
        return r
    e("s_waitcnt vmcnt(24)", "s_barrier")
    e(*g1_rd(A0, B0, XA0, 0))
    e("s_waitcnt lgkmcnt(0)")
    dg = g1_dma(("s30", "s34"), ("s30", "s35"))
    def fix_m0(dg):
        out = []
        for g in dg:
            if len(g) == 2:
                out.append([g[0], "s_nop 0", g[1]])
            else: out.append(g)
        return out
    k1_loop(a, "G1", 32768, g1_mf(A0, B0), g1_mf(A1, B1), g1_rd(A1, B1, XA1, 1), g1_rd(A0, B0, XA0, 0),
            [WA+t for t in range(8)] + [XA0, XA1], fix_m0(dg), W1_SZ, 8, 196608)
    e("s_nop 7", "s_nop 7")
    e("s_lshl_b32 s62, s24, 7", "s_add_u32 s62, s62, 131072")
    e(f"v_lshl_add_u32 v5, v2, 4, s62")
    e(f"ds_write_b128 v5, {vr(CS,4)}", f"ds_write_b128 v5, {vr(CS+4,4)} offset:64")
    MB, RS = [T+12, T+13], [T+14, T+15]
    stats_code(a, [SUM, SUM+4], [SQ, SQ+4], T, [(MB[0], RS[0]), (MB[1], RS[1])])
    for mt in range(2):
        e(f"v_mul_f32 v{RS[mt]}, {fhex(-LOG2E)}, v{RS[mt]}")
    e("s_waitcnt lgkmcnt(0)", "s_barrier")
    CSR = A0
    for t in range(8):
        e("s_lshl_b32 s62, s24, 1", f"s_add_u32 s62, s62, {t}", "s_and_b32 s62, s62, 7", "s_lshl_b32 s62, s62, 6", "s_add_u32 s62, s62, 131072",
          f"v_lshl_add_u32 v5, v2, 4, s62", f"ds_read_b128 {vr(CSR+4*t,4)}, v5")
    e(f"s_mov_b32 s14, {H_SZ}")
    e("s_and_b32 s62, s60, 31", "s_mul_i32 s62, s62, 48", "s_lshl_b32 s63, s26, 2", "s_add_u32 s62, s62, s63", "s_lshl_b32 s62, s62, 2",
      "s_lshr_b32 s63, s25, 3", "s_lshl_b32 s63, s63, 1", "s_add_u32 s62, s62, s63", "s_lshl_b32 s62, s62, 10")
    e("v_lshlrev_b32 v6, 4, v0")
    e("s_waitcnt lgkmcnt(0)")
    TT = A1
    for u in range(4):
        e(f"s_add_u32 s63, s24, {u}", "s_and_b32 s63, s63, 3", "s_lshl_b32 s63, s63, 12", "s_add_u32 s63, s63, s62")
        for mt in range(2):
            tb = TT + ((u*2+mt) & 1) * 20
            z = tb; ex = tb + 8; pk = tb + 16
            vals = [(ACC + ((2*u+h)*2+mt)*4 + r, CSR + (2*u+h)*4 + r) for h in range(2) for r in range(4)]
            for k, (ac, cs) in enumerate(vals): e(f"v_fma_f32 v{z+k}, -v{MB[mt]}, v{cs}, v{ac}")
            for k in range(8): e(f"v_mul_f32 v{z+k}, v{RS[mt]}, v{z+k}")
            for k in range(8): e(f"v_exp_f32 v{ex+k}, v{z+k}")
            for k in range(8): e(f"v_add_f32 v{ex+k}, 1.0, v{ex+k}")
            for k in range(8): e(f"v_rcp_f32 v{ex+k}, v{ex+k}")
            for k in range(8): e(f"v_mul_f32 v{z+k}, v{z+k}, v{ex+k}")
            for k in range(4): e(f"v_cvt_pk_bf16_f32 v{pk+k}, v{z+2*k}, v{z+2*k+1}")
            e(f"buffer_store_dwordx4 {vr(pk,4)}, v6, s[12:15], s63 offen offset:{1024*mt}")
    e("s_endpgm")
    a.lab("K1_dft")
    XV, DV, XA0, XA1, BA0, BA1 = 8, 12, 17, 18, 19, 20
    ACC, SUM, SQ, ONES = 24, 104, 112, 120
    A0, B0, A1, B1 = 124, 132, 172, 180
    WC = 220
    e("s_lshl_b32 s26, s59, 1", "s_add_u32 s26, s26, s58", "s_sub_u32 s26, s26, 6")
    e("v_xor_b32 v5, v4, v2", "v_lshlrev_b32 v5, 4, v5")
    e("v_lshrrev_b32 v6, 2, v3", "v_and_b32 v7, 3, v3", "v_lshl_add_u32 v6, v6, 3, v7")
    e("v_mov_b32 v7, 81920", "v_mul_u32_u24 v6, v7, v6")
    e("v_add3_u32 v6, v6, v5, s61")
    e(f"v_mov_b32 v{XV}, v6", "v_xor_b32 v7, 64, v6")
    e(f"v_add_u32 v{XV+1}, {16*81920-1024}, v7")
    e(f"v_add_u32 v{XV+2}, {4*81920-2048}, v6")
    e(f"v_add_u32 v{XV+3}, {20*81920-3072}, v7")
    e("s_and_b32 s62, s24, 1", "s_lshl_b32 s63, s62, 2", "v_add_u32 v5, s63, v2", "v_xor_b32 v5, v5, v4", "v_lshlrev_b32 v5, 4, v5")
    e("s_mul_i32 s63, s26, 80", "s_lshl_b32 s62, s62, 3", "s_add_u32 s63, s63, s62", "v_add_u32 v6, s63, v3")
    e("v_mov_b32 v7, 1280", "v_mad_u32_u24 v21, v6, v7, v5")
    for j in range(1, 5):
        e(f"v_add_u32 v{DV+j}, {16*1280*j - (1024*j if j < 4 else 0)}, v21")
    e("v_cmp_eq_u32 vcc, 0, v6", f"v_add_u32 v22, {320*1280}, v21", "s_nop 0", f"v_cndmask_b32 v{DV}, v21, v22, vcc")
    e("s_waitcnt lgkmcnt(0)")
    e("v_lshlrev_b32 v5, 18, v1", "v_lshl_add_u32 v5, v2, 4, v5", f"v_add_u32 v6, {16*262144}, v5")
    e(f"global_load_dwordx4 {vr(WC,4)}, v5, s[44:45]", f"global_load_dwordx4 {vr(WC+4,4)}, v6, s[44:45]")
    e(f"global_load_dwordx4 {vr(WC+8,4)}, v5, s[46:47]", f"global_load_dwordx4 {vr(WC+12,4)}, v6, s[46:47]")
    e("s_cmp_ge_u32 s24, 2", "s_cselect_b32 s8, s38, s36", "s_cselect_b32 s9, s39, s37", f"s_mov_b32 s10, {WD_SZ}")
    def dft_dma(base0, base1):
        g = []
        g.append([f"s_add_u32 m0, {base0[0]}, {base0[1]}", "s_nop 0", f"buffer_load_dwordx4 v{XV}, s[4:7], s28 offen lds"])
        for j in range(1, 4):
            g.append([f"buffer_load_dwordx4 v{XV+j}, s[4:7], s28 offen offset:{1024*j} lds"])
        g.append([f"s_add_u32 m0, {base1[0]}, {base1[1]}", "s_nop 0", f"buffer_load_dwordx4 v{DV}, s[8:11], s28 offen lds"])
        for j in range(1, 4):
            g.append([f"buffer_load_dwordx4 v{DV+j}, s[8:11], s28 offen offset:{1024*j} lds"])
        g.append(["s_add_u32 m0, m0, 4096", "s_nop 0", f"buffer_load_dwordx4 v{DV+4}, s[8:11], s28 offen lds"])
        return g
    e("s_mov_b32 s28, 0", "s_mul_i32 s35, s24, 5120", "s_add_u32 s35, s35, 16384")
    for st in range(4):
        for g in dft_dma(("s34", st*36864), ("s35", st*36864)): e(*g)
        e("s_add_u32 s28, s28, 128")
    e(f"v_lshrrev_b32 v5, 1, v1", "v_xor_b32 v5, v5, v2", "v_lshlrev_b32 v5, 4, v5")
    e(f"v_lshl_add_u32 v6, v1, 7, v5", f"v_add_u32 v{XA0}, s34, v6", f"v_xor_b32 v{XA1}, 64, v{XA0}")
    e("v_lshrrev_b32 v6, 3, v1", "v_mul_u32_u24 v6, 5120, v6", "v_and_b32 v7, 7, v1", "v_lshl_add_u32 v6, v7, 7, v6")
    e(f"v_add_u32 v6, v6, v5", f"v_add_u32 v{BA0}, 16384, v6", f"v_xor_b32 v{BA1}, 64, v{BA0}")
    for r in range(ACC, ONES): e(f"v_mov_b32 v{r}, 0")
    for r in range(ONES, ONES+4): e(f"v_mov_b32 v{r}, 0x3f803f80")
    T = 236
    lane_masks(a, T)
    def dacc(p, part, mt): return ACC + ((p*2+part)*2+mt)*4
    def dft_mf(Ab, Bb):
        m = []
        for p in range(5):
            for part in range(2):
                for mt in range(2):
                    m.append(mfma(dacc(p, part, mt), Ab + 4*mt, Bb + (part*5+p)*4))
            if p < 2: m.append(mfma(SUM + 4*p, ONES, Ab + 4*p))
            if p in (2, 3): m.append(mfma(SQ + 4*(p-2), Ab + 4*(p-2), Ab + 4*(p-2)))
        return m
    def dft_rd(Ab, Bb, xa, ba):
        r = []
        for mt in range(2): r.append(f"ds_read_b128 {vr(Ab+4*mt,4)}, v{xa} offset:{2048*mt}")
        for p in range(5):
            for part in range(2):
                r.append(f"ds_read_b128 {vr(Bb+(part*5+p)*4,4)}, v{ba} offset:{part*10240+p*1024}")
        return r
    e("s_waitcnt vmcnt(27)", "s_barrier")
    e(*dft_rd(A0, B0, XA0, BA0))
    e("s_waitcnt lgkmcnt(0)")
    k1_loop(a, "DF", 36864, dft_mf(A0, B0), dft_mf(A1, B1), dft_rd(A1, B1, XA1, BA1), dft_rd(A0, B0, XA0, BA0),
            [XA0, XA1, BA0, BA1], dft_dma(("s30", "s34"), ("s30", "s35")), WD_SZ, 9, 0)
    e("s_nop 7", "s_nop 7")
    MB, RS = [T+12, T+13], [T+14, T+15]
    stats_code(a, [SUM, SUM+4], [SQ, SQ+4], T, [(MB[0], RS[0]), (MB[1], RS[1])])
    RR = A0
    e("v_lshlrev_b32 v5, 4, v2")
    for mt in range(2):
        for r in range(4):
            e(f"v_add_u32 v6, {4*r}, v5", f"ds_bpermute_b32 v{RR+mt*4+r}, v6, v{RS[mt]}")
    for k in range(8): e(f"v_xor_b32 v{WC+16+k}, 0x80008000, v{WC+8+k}")
    e("s_waitcnt lgkmcnt(0)")
    PK = B0
    TM = A1
    for p in range(5):
        for part in range(2):
            for mt in range(2):
                ac = dacc(p, part, mt)
                for r in range(4): e(f"v_mul_f32 v{ac+r}, v{ac+r}, v{RR+mt*4+r}")
            for mt in range(2):
                ac = dacc(p, part, mt)
                for h in range(2): e(f"v_cvt_pk_bf16_f32 v{PK+8*p+4*part+2*mt+h}, v{ac+2*h}, v{ac+2*h+1}")
    e("s_nop 1")
    def ud(p, nt, c): return ACC + p*16 + nt*8 + 4*c
    for p in range(5):
        aa, bb = PK+8*p, PK+8*p+4
        for nt in range(2):
            e(mfma0(ud(p, nt, 0), aa, WC + 4*nt))
            e(mfma0(ud(p, nt, 1), aa, WC + 8 + 4*nt))
        for nt in range(2):
            e(mfma(ud(p, nt, 0), bb, WC + 16 + 4*nt))
            e(mfma(ud(p, nt, 1), bb, WC + 4*nt))
    e(f"s_mov_b32 s14, {U_SZ}", f"s_add_u32 s12, s12, {U_OFF}", "s_addc_u32 s13, s13, 0")
    e("s_mul_i32 s62, s60, 80", "s_mul_i32 s63, s26, 20", "s_add_u32 s62, s62, s63", "s_lshl_b32 s62, s62, 4")
    e("v_mov_b32 v7, 81920", "v_mul_u32_u24 v5, v7, v1", "v_lshl_add_u32 v5, v2, 4, v5", f"v_add_u32 v6, {16*81920}, v5")
    e("s_nop 7")
    k = 0
    for p in range(5):
        for nt in range(2):
            tb = A1 + (k % 4) * 4; k += 1
            re, im = ud(p, nt, 0), ud(p, nt, 1)
            e(f"v_cvt_pk_bf16_f32 v{tb}, v{re}, v{re+1}", f"v_cvt_pk_bf16_f32 v{tb+1}, v{re+2}, v{re+3}",
              f"v_cvt_pk_bf16_f32 v{tb+2}, v{im}, v{im+1}", f"v_cvt_pk_bf16_f32 v{tb+3}, v{im+2}, v{im+3}")
            e(f"buffer_store_dwordx4 {vr(tb,4)}, v{5+nt}, s[12:15], s62 offen offset:{64*p}")
    a.lab("K1_end")
    e("s_endpgm")


DBG = None
def gen_k2(a):
    e = a.e
    STG, UB, YB, RB = 0, 102400, 131072, 0
    NS = 5
    HR = 7
    HV, WV, TRA, UA, XO = 251, 8, 13, 14, 15
    Y, XR, ACC, HB, T = 16, 40, 52, 132, 244
    e("s_cmp_ge_u32 s2, 256", "s_cbranch_scc1 K2_end")
    e("s_load_dwordx2 s[4:5], s[0:1], 80")
    e("s_load_dwordx2 s[8:9], s[0:1], 56")
    e("s_load_dwordx2 s[16:17], s[0:1], 0")
    e("s_load_dwordx2 s[20:21], s[0:1], 64")
    e("s_load_dwordx4 s[44:47], s[0:1], 8")
    e("v_lshrrev_b32 v1, 6, v0", "v_and_b32 v0, 63, v0")
    e("v_readfirstlane_b32 s24, v1")
    e("s_and_b32 s48, s2, 7", "s_lshr_b32 s49, s2, 3", "s_lshr_b32 s56, s48, 1", "s_lshl_b32 s56, s56, 3",
      "s_and_b32 s57, s49, 7", "s_add_u32 s25, s56, s57",
      "s_and_b32 s56, s48, 1", "s_lshl_b32 s56, s56, 2", "s_lshr_b32 s57, s49, 3", "s_add_u32 s26, s56, s57")
    e("v_and_b32 v1, 15, v0", "v_lshrrev_b32 v2, 4, v0")
    for (w2i, sz) in ((6, H_SZ), (10, W2_SZ), (14, U_SZ), (18, X_SZ), (22, X_SZ)):
        e(f"s_mov_b32 s{w2i}, {sz}", f"s_mov_b32 s{w2i+1}, {SRD3}")
    e("s_sub_u32 s56, 32, s25", "s_and_b32 s56, s56, 31", "s_mul_i32 s57, s26, 20", "s_sub_u32 s58, 140, s57",
      "s_cmp_ge_u32 s26, 4", "s_cselect_b32 s27, 1, 0", "s_cselect_b32 s28, s56, s25", "s_cselect_b32 s29, s58, s57")
    e("s_and_b32 s56, s24, 1", "s_lshl_b32 s56, s56, 10", "s_lshr_b32 s57, s24, 1", "s_lshl_b32 s57, s57, 5", "s_add_u32 s30, s56, s57", "s_add_u32 s30, s30, s25")
    e("s_waitcnt lgkmcnt(0)")
    e("s_mov_b32 s12, s4", "s_mov_b32 s13, s5", f"s_add_u32 s12, s12, {U_OFF}", "s_addc_u32 s13, s13, 0")
    WB = ACC
    e("v_lshlrev_b32 v5, 6, v1", "v_add_u32 v5, s30, v5", "v_lshlrev_b32 v5, 12, v5",
      "v_lshrrev_b32 v6, 1, v2", "v_lshl_add_u32 v5, v6, 4, v5")
    e("v_and_b32 v6, 1, v2", "v_cmp_eq_u32 vcc, 0, v6", "s_mov_b64 s[58:59], exec", "s_and_b64 exec, s[58:59], vcc")
    for k in range(4): e(f"global_load_dwordx4 {vr(WB+4*k,4)}, v5, s[44:45] offset:{32*k}")
    e("s_andn2_b64 exec, s[58:59], vcc")
    for k in range(4): e(f"global_load_dwordx4 {vr(WB+4*k,4)}, v5, s[46:47] offset:{32*k}")
    e("s_mov_b64 exec, s[58:59]")
    e("v_mov_b32 v7, 81920", f"v_mul_u32_u24 v{XO}, v7, v1", f"v_lshl_add_u32 v{XO}, v2, 3, v{XO}")
    e("s_mul_i32 s31, s30, 1280", "s_mul_i32 s56, s26, 160", "s_add_u32 s31, s31, s56")
    for nt in range(5): e(f"buffer_load_dwordx2 {vr(XR+2*nt,2)}, v{XO}, s[16:19], s31 offen offset:{32*nt}")
    e("s_mul_i32 s32, s28, 81920")
    e("s_mul_i32 s56, s24, 448", "v_add_u32 v5, s56, v0")
    e("s_mul_i32 s57, s24, 7168", f"s_add_u32 s57, s57, {UB}")
    for n in range(7):
        e(f"v_add_u32 v6, {64*n}, v5", "v_mul_u32_u24 v7, 2341, v6", "v_lshrrev_b32 v7, 16, v7",
          "v_mul_u32_u24 v8, 28, v7", "v_sub_u32 v6, v6, v8", "v_add_u32 v6, s29, v6",
          "v_subrev_u32 v8, 80, v6", "v_cmp_le_u32 vcc, 80, v6", "v_lshlrev_b32 v9, 8, v7", "v_cndmask_b32 v6, v6, v8, vcc",
          "v_lshl_add_u32 v9, v7, 10, v9", f"s_add_u32 m0, s57, {1024*n}", f"v_lshl_add_u32 v{T+n}, v6, 4, v9",
          f"buffer_load_dwordx4 v{T+n}, s[12:15], s32 offen lds")
    e("v_mov_b32 v3, 205")
    for jj in range(5):
        e(f"v_add_u32 v5, {64*jj}, v0", "v_mul_u32_u24 v6, v3, v5", "v_lshrrev_b32 v6, 11, v6",
          "v_mul_u32_u24 v7, 10, v6", "v_sub_u32 v5, v5, v7", "v_mov_b32 v7, 1280", "v_mul_u32_u24 v6, v7, v6", "v_lshl_add_u32 v5, v5, 4, v6")
        e(f"v_subrev_u32 v{WV+jj}, {1024*jj if jj < 4 else 0}, v5")
    for mu in range(4):
        e(f"s_add_u32 s56, s24, {mu}", "s_and_b32 s56, s56, 3", "s_lshl_b32 s56, s56, 10", f"v_lshl_add_u32 v{HV+mu}, v0, 4, s56")
    e("s_mul_i32 s33, s24, 491520", "s_mul_i32 s56, s26, 160", "s_add_u32 s33, s33, s56")
    e("s_mul_i32 s34, s25, 48", "s_mul_i32 s56, s24, 12", "s_add_u32 s34, s34, s56", "s_lshl_b32 s34, s34, 12")
    e(f"s_mul_i32 s35, s24, {NS*5120}")
    def issue(kk):
        g = []
        sl = kk % NS
        g.append([f"s_add_u32 m0, s35, {sl*5120}", "s_nop 0", f"buffer_load_dwordx4 v{WV}, s[8:11], s33 offen lds"])
        for jj in range(1, 4): g.append([f"buffer_load_dwordx4 v{WV+jj}, s[8:11], s33 offen offset:{1024*jj} lds"])
        g.append([f"s_add_u32 m0, s35, {sl*5120+4096}", "s_nop 0", f"buffer_load_dwordx4 v{WV+4}, s[8:11], s33 offen lds", "s_add_u32 s33, s33, 40960"])
        hb = HB + (kk % HR)*16
        for mu in range(4): g.append([f"buffer_load_dwordx4 {vr(hb+4*mu,4)}, v{HV+mu}, s[4:7], s34 offen"])
        g[-1].append("s_add_u32 s34, s34, 4096")
        return g
    for kk in range(NS):
        for g in issue(kk): e(*g)
    e("v_lshrrev_b32 v5, 2, v1", "v_lshl_add_u32 v5, v2, 2, v5", "v_mul_u32_u24 v5, 160, v5", "v_and_b32 v6, 3, v1", "v_lshl_add_u32 v5, v6, 3, v5",
      f"v_add_u32 v{TRA}, s35, v5")
    e("v_lshrrev_b32 v5, 2, v1", "v_lshrrev_b32 v6, 1, v2", "v_lshl_add_u32 v5, v6, 3, v5", "v_mul_u32_u24 v5, 448, v5",
      "v_and_b32 v6, 3, v1", "v_lshl_add_u32 v5, v6, 4, v5", "v_and_b32 v6, 1, v2", "v_lshl_add_u32 v5, v6, 3, v5", f"v_add_u32 v{UA}, {UB}, v5")
    e("s_cmp_eq_u32 s27, 0", "s_cselect_b32 s56, 0x80008000, 0", "v_and_b32 v6, 1, v2", "v_mul_lo_u32 v6, v6, s56")
    e(f"s_waitcnt vmcnt({9*NS})", "s_barrier")
    for k in range(16): e(f"v_xor_b32 v{WB+k}, v6, v{WB+k}")
    UAb = ACC + 16
    def urd(k):
        r = []
        for t in range(6):
            for hf in range(2):
                r.append(f"ds_read_b64_tr_b16 {vr(UAb+(k&1)*24+4*t+2*hf,2)}, v{UA} offset:{k*7168+hf*1792+t*64}")
        return r
    e(*urd(0))
    for k in range(4):
        e("s_waitcnt lgkmcnt(0)")
        m = [(mfma0 if k == 0 else mfma)(Y+4*t, UAb+(k&1)*24+4*t, WB+4*k) for t in range(6)]
        fill = [[x] for x in urd(k+1)] if k < 3 else []
        e(*interleave(m, fill, per=2))
    e("s_nop 7", "s_nop 1")
    e("s_cmp_eq_u32 s27, 0", "s_cbranch_scc1 K2_direct")
    e(f"s_mul_i32 s56, s24, 7424", f"s_add_u32 s56, s56, {YB}", "v_mov_b32 v7, 464", "v_mul_u32_u24 v5, v7, v1", "v_add_u32 v5, s56, v5",
      "v_lshlrev_b32 v6, 4, v2", "v_sub_u32 v7, v5, v6", "v_add_u32 v7, 52, v7", "v_add_u32 v5, v5, v6")
    for t in range(6):
        for r in (0, 2):
            o0 = (5-t)*16 + 3 - r
            e(f"ds_write2_b32 v7, v{Y+4*t+r}, v{Y+4*t+r+1} offset0:{o0} offset1:{o0-1}")
    e("s_waitcnt lgkmcnt(0)")
    for nt in range(5): e(f"ds_read_b128 {vr(Y+4*nt,4)}, v5 offset:{64+64*nt}")
    e("s_branch K2_ydone")
    a.lab("K2_direct")
    e("s_cmp_eq_u32 s26, 0", "s_cselect_b64 s[58:59], -1, 0", "v_cmp_eq_u32 vcc, 0, v2", "s_and_b64 vcc, vcc, s[58:59]", "s_nop 1", f"v_cndmask_b32 v{Y}, v{Y}, 0, vcc" if False else f"v_cndmask_b32_e64 v{Y}, v{Y}, 0, vcc")
    a.lab("K2_ydone")
    def trd(kk):
        r = []
        sl = kk % NS
        for nt in range(5):
            for hf in range(2):
                r.append(f"ds_read_b64_tr_b16 {ar(20*kk+4*nt+2*hf,2)}, v{TRA} offset:{sl*5120+hf*2560+nt*32}")
        return r
    e(f"s_waitcnt vmcnt({9*(NS-1)})")
    e(*trd(0))
    e("s_waitcnt lgkmcnt(0)")
    for g in issue(NS): e(*g)
    issued = NS
    for kk in range(12):
        if kk+1 <= 11:
            e(f"s_waitcnt vmcnt({9*(issued-(kk+1))})")
        hb = HB + (kk % HR)*16
        m = []
        for nt in range(5):
            for mu in range(4):
                d = ACC + (mu*5+nt)*4
                m.append((mfma0 if kk == 0 else mfma)(d, 20*kk+4*nt, hb+4*mu, aa=True))
        fill = [[x] for x in trd(kk+1)] if kk < 11 else []
        e(*interleave(m, fill, per=1))
        e("s_waitcnt lgkmcnt(0)")
        if issued < 11:
            issued += 1
            for g in issue(issued): e(*g)
    e("s_nop 7", "s_barrier")
    e("v_mov_b32 v7, 336", "v_mul_u32_u24 v5, v7, v1", "v_lshl_add_u32 v5, v2, 4, v5")
    for mu in range(1, 4):
        e(f"s_add_u32 s56, s24, {mu}", "s_and_b32 s56, s56, 3", "s_mul_i32 s56, s56, 3", f"s_add_u32 s56, s56, {mu-1}", f"s_mul_i32 s56, s56, {16*336}",
          f"v_add_u32 v6, s56, v5")
        for nt in range(5): e(f"ds_write_b128 v6, {vr(ACC+(mu*5+nt)*4,4)} offset:{RB+64*nt}")
    e(f"s_mul_i32 s56, s24, {3*16*336}", "v_add_u32 v6, s56, v5")
    e("s_waitcnt lgkmcnt(0)", "s_barrier")
    P = HB
    for i in range(3):
        for nt in range(5): e(f"ds_read_b128 {vr(P+(i*5+nt)*4,4)}, v6 offset:{RB+i*16*336+64*nt}")
    e("s_waitcnt lgkmcnt(0)")
    for nt in range(5):
        o = ACC + nt*4
        for r in range(4): e(f"v_add_f32 v{o+r}, v{o+r}, v{P+nt*4+r}")
        for r in range(4): e(f"v_add_f32 v{P+20+nt*4+r}, v{P+20+nt*4+r}, v{P+40+nt*4+r}")
        for r in range(4): e(f"v_add_f32 v{o+r}, v{o+r}, v{P+20+nt*4+r}")
    for nt in range(5):
        o = ACC + nt*4; ex = P + 60 + nt*4; xx = P + 80 + nt*4; pk = P + 100 + nt*2
        if DBG == 'o':
            for r in range(4): e(f"v_mov_b32 v{T+r}, v{o+r}")
        for r in range(4): e(f"v_exp_f32 v{ex+r}, v{o+r}")
        e(f"v_lshlrev_b32 v{xx}, 16, v{XR+2*nt}", f"v_and_b32 v{xx+1}, 0xffff0000, v{XR+2*nt}",
          f"v_lshlrev_b32 v{xx+2}, 16, v{XR+2*nt+1}", f"v_and_b32 v{xx+3}, 0xffff0000, v{XR+2*nt+1}")
        for r in range(4): e(f"v_add_f32 v{ex+r}, 1.0, v{ex+r}")
        for r in range(4): e(f"v_rcp_f32 v{ex+r}, v{ex+r}")
        for r in range(4): e(f"v_mul_f32 v{o+r}, v{o+r}, v{Y+4*nt+r}")
        for r in range(4): e(f"v_mul_f32 v{o+r}, v{o+r}, v{ex+r}")
        for r in range(4): e(f"v_fmamk_f32 v{xx+r}, v{o+r}, {fhex(-LN2)}, v{xx+r}")
        if DBG == 'y':
            for r in range(4): e(f"v_mov_b32 v{xx+r}, v{Y+4*nt+r}")
        if DBG == 'o':
            for r in range(4): e(f"v_mov_b32 v{xx+r}, v{T+r}")
        e(f"v_cvt_pk_bf16_f32 v{pk}, v{xx}, v{xx+1}", f"v_cvt_pk_bf16_f32 v{pk+1}, v{xx+2}, v{xx+3}")
        e(f"buffer_store_dwordx2 {vr(pk,2)}, v{XO}, s[20:23], s31 offen offset:{32*nt}")
    a.lab("K2_end")
    e("s_endpgm")

def kernel_desc(name, nv=256, acc=256, total=None):
    return f""".amdhsa_kernel {name}
  .amdhsa_next_free_vgpr {total or nv}
  .amdhsa_next_free_sgpr 102
  .amdhsa_accum_offset {acc}
  .amdhsa_group_segment_fixed_size 0
  .amdhsa_kernarg_size 88
  .amdhsa_user_sgpr_count 2
  .amdhsa_user_sgpr_kernarg_segment_ptr 1
  .amdhsa_system_sgpr_workgroup_id_x 1
.end_amdhsa_kernel
"""

def build(kernels):
    out = HEADER
    for (lab, fn, lds, tot) in kernels:
        out += f"; @launch kernel={lab} grid=(256,1,1) block=(256,1,1) lds={lds}\n"
    out += '.amdgcn_target "amdgcn-amd-amdhsa--gfx950"\n.text\n'
    for (lab, fn, lds, tot) in kernels:
        a = A(); fn(a)
        out += f".globl {lab}\n.p2align 8\n.type {lab},@function\n{lab}:\n" + a.text()
    out += '.section .rodata,"a"\n'
    for (lab, fn, lds, tot) in kernels:
        out += ".p2align 6\n" + kernel_desc(lab, 256, 256, tot)
    return out

if __name__ == "__main__":
    which = sys.argv[1]
    if len(sys.argv) > 3: DBG = sys.argv[3]
    out = sys.argv[2]
    if which == "k1":
        txt = build([("k1_kernel", gen_k1, 147456, 256)])
    if which == "k12":
        txt = build([("k1_kernel", gen_k1, 147456, 256), ("k2_kernel", gen_k2, 160768, 512)])
    open(out, "w").write(txt)
```

```python
import sys
from asmlib import *
KN = "recurrent_scan__spectral_fnet__dense_activation_silu__prompt"
LOG2E = 1.4426950408889634
LN2 = 0.6931471805599453
H_OFF = 0; H_SZ = 32*48*4*1024
U_OFF = 0x600000; U_SZ = 32*64*80*16
X_SZ = 2048*1280; W1_SZ = 640*3072; WD_SZ = 640*1280; W2_SZ = 1536*1280
SRD3 = "0x00020000"

HEADER = open("cdna_kernels/%s.s.ref" % KN).read().split("; Override launch geometry")[0]

STAMP = False
OPT = set()
def stamp(a, i, rt=False):
    if not STAMP: return
    a.e(f"s_mem{'real' if rt else ''}time s[{70+2*i}:{71+2*i}]")
def lstamp(a, lane):
    if STAMP and 'pro' in OPT: a.e("s_memtime s[66:67]", "s_waitcnt lgkmcnt(0)", f"v_writelane_b32 v255, s66, {lane}")
def stamp_out(a, kidx):
    if not STAMP: return
    e = a.e
    e("s_waitcnt vmcnt(0)")
    stamp(a, 7); stamp(a, 1, True)
    e("s_waitcnt lgkmcnt(0)", "v_writelane_b32 v255, s74, 0")
    e("s_load_dwordx2 s[98:99], s[0:1], 80", "s_waitcnt lgkmcnt(0)")
    e(f"s_add_u32 s98, s98, {0xF00000 + kidx*0x40000}", "s_addc_u32 s99, s99, 0")
    e("s_lshl_b32 s96, s2, 8", "s_lshl_b32 s97, s24, 6", "s_add_u32 s96, s96, s97", "v_mov_b32 v1, s96")
    e("v_lshlrev_b32 v4, 2, v0", "v_add_u32 v4, s96, v4", f"v_add_u32 v4, {0x10000}, v4")
    e("s_mov_b64 exec, 0xffff", "global_store_dword v4, v255, s[98:99]")
    e("s_mov_b64 exec, 1")
    for i in range(8):
        e(f"v_mov_b32 v2, s{70+2*i}", f"v_mov_b32 v3, s{71+2*i}", f"global_store_dwordx2 v1, v[2:3], s[98:99] offset:{8*i}", "s_nop 1")
    e("s_waitcnt vmcnt(0)")

def stats_code(a, S, Q, T, outs):
    e = a.e
    bp = T + 11
    for mt in range(2):
        t = T + mt
        e(f"v_cndmask_b32 v{t}, v{Q[mt]}, v{Q[mt]+1}, s[50:51]")
        e(f"v_cndmask_b32 v{t}, v{t}, v{Q[mt]+2}, s[52:53]")
        e(f"v_cndmask_b32 v{t}, v{t}, v{Q[mt]+3}, s[54:55]")
    for mt in range(2):
        e(f"ds_bpermute_b32 v{T+2+mt}, v{bp}, v{T+mt}")
    e("s_waitcnt lgkmcnt(0)")
    inv = fhex(1.0/640.0)
    for mt in range(2):
        sq = T+2+mt; mean = T+4+mt; m_b, rstd = outs[mt]; t = T+6+mt
        e(f"v_mul_f32 v{mean}, {inv}, v{S[mt]}")
        e(f"v_mul_f32 v{sq}, {inv}, v{sq}")
        e(f"v_fma_f32 v{sq}, -v{mean}, v{mean}, v{sq}")
        e(f"v_max_f32 v{sq}, 0, v{sq}")
        e(f"v_cvt_pk_bf16_f32 v{t}, v{mean}, v{sq}")
        e(f"v_lshlrev_b32 v{m_b}, 16, v{t}")
        e(f"v_and_b32 v{t}, 0xffff0000, v{t}")
        e(f"v_add_f32 v{t}, {fhex(1e-5)}, v{t}")
        e(f"v_cvt_pk_bf16_f32 v{t}, v{t}, v{t}")
        e(f"v_and_b32 v{t}, 0xffff0000, v{t}")
        e(f"v_sqrt_f32 v{t}, v{t}")
        e("s_nop 0")
        e(f"v_cvt_pk_bf16_f32 v{t}, v{t}, v{t}")
        e(f"v_and_b32 v{t}, 0xffff0000, v{t}")
        e(f"v_rcp_f32 v{rstd}, v{t}")
    e("s_nop 0")

def lane_masks(a, T):
    e = a.e
    e(f"v_and_b32 v{T}, 3, v0")
    e(f"v_cmp_eq_u32 s[50:51], 1, v{T}")
    e(f"v_cmp_eq_u32 s[52:53], 2, v{T}")
    e(f"v_cmp_eq_u32 s[54:55], 3, v{T}")
    e(f"v_and_b32 v{T}, 15, v0")
    e(f"v_lshrrev_b32 v{T+11}, 2, v{T}")
    e(f"v_lshlrev_b32 v{T+11}, 6, v{T+11}")
    e(f"v_lshl_add_u32 v{T+11}, v{T}, 2, v{T+11}")

def k1_loop(a, name, slot, mf0, mf1, rd1, rd0, addr_regs, dma_groups, wsz, nd, soffw_inc):
    e = a.e
    e(f"s_mov_b32 s27, 0", f"s_mov_b32 s64, {slot}")
    e(".p2align 5")
    a.lab(f"{name}_loop")
    pre = [
        "s_cmp_lt_u32 s27, 6",
        f"s_cselect_b32 s6, {X_SZ}, 0",
        f"s_cselect_b32 s10, {wsz}, 0",
        "s_and_b32 s33, s27, 3",
        f"s_mul_i32 s30, s33, {slot}",
        "s_cmp_eq_u32 s33, 3",
        f"s_cselect_b32 s32, {-3*slot}, s64",
    ]
    upd = [[f"v_add_u32 v{r}, s32, v{r}"] for r in addr_regs]
    n = len(mf0)
    plan = {}
    for i, r in enumerate(rd1):
        plan.setdefault(i, []).append(r)
    for i, p in enumerate(pre):
        plan.setdefault(i, []).append(p)
    k = len(rd1)
    idx = k
    ui = 0
    while ui < len(upd):
        j = min(idx, n-1)
        for _ in range(3):
            if ui < len(upd):
                plan.setdefault(j, []).extend(upd[ui]); ui += 1
        idx += 1
    e(*slots_merge(mf0, plan))
    e(f"s_waitcnt vmcnt({2*nd}) lgkmcnt(0)")
    e("s_barrier")
    plan = {}
    for i, r in enumerate(rd0):
        plan.setdefault(i, []).append(r)
    ng = len(dma_groups)
    for gi, g in enumerate(dma_groups):
        j = 1 + (gi * (n-3)) // ng
        plan.setdefault(j, []).extend(g)
    plan.setdefault(n-2, []).extend(["s_add_u32 s28, s28, 128"] + ([f"s_add_u32 s29, s29, {soffw_inc}"] if soffw_inc else []) + ["s_add_u32 s27, s27, 1"])
    plan.setdefault(n-1, []).extend(["s_cmp_lt_u32 s27, 10"])
    e(*slots_merge(mf1, plan))
    if STAMP: e("s_memtime s[66:67]")
    e("s_waitcnt lgkmcnt(0)")
    if STAMP: e("v_mov_b32 v254, s66", "v_cmp_eq_u32 vcc, s27, v0", "s_nop 1", "v_cndmask_b32 v255, v255, v254, vcc")
    e(f"s_cbranch_scc1 {name}_loop")

def gen_k1(a):
    e = a.e
    e("s_cmp_ge_u32 s2, 256", "s_cbranch_scc1 K1_end")
    stamp(a, 0, True); stamp(a, 2)
    e("s_load_dwordx2 s[4:5], s[0:1], 0")
    e("s_load_dwordx4 s[36:39], s[0:1], 24")
    e("s_load_dwordx2 s[40:41], s[0:1], 48")
    e("s_load_dwordx2 s[12:13], s[0:1], 80")
    e("s_load_dwordx4 s[44:47], s[0:1], 8")
    e("v_lshrrev_b32 v1, 6, v0", "v_and_b32 v0, 63, v0")
    e("v_readfirstlane_b32 s24, v1")
    e("s_and_b32 s48, s2, 7", "s_lshr_b32 s49, s2, 3", "s_lshr_b32 s56, s48, 1", "s_lshl_b32 s56, s56, 2",
      "s_and_b32 s57, s49, 3", "s_add_u32 s25, s56, s57", "s_lshr_b32 s58, s49, 2", "s_and_b32 s59, s48, 1")
    e("v_and_b32 v1, 15, v0", "v_lshrrev_b32 v2, 4, v0", "v_lshrrev_b32 v3, 3, v0", "v_and_b32 v4, 7, v0")
    e(f"s_mov_b32 s6, {X_SZ}", f"s_mov_b32 s7, {SRD3}", f"s_mov_b32 s11, {SRD3}", f"s_mov_b32 s15, {SRD3}")
    e("s_lshl_b32 s60, s25, 2", "s_add_u32 s60, s60, s24", "s_mul_i32 s61, s60, 1280", "s_lshl_b32 s34, s24, 12")
    e("s_cmp_ge_u32 s58, 6", "s_cbranch_scc1 K1_dft")
    XV, WV, WA, XA0, XA1 = 8, 12, 16, 24, 25
    ACC, CS, SUM, SQ, ONES = 32, 96, 104, 112, 120
    A0, B0, A1, B1 = 124, 156, 164, 196
    T = 204
    e("s_mul_i32 s26, s59, 6", "s_add_u32 s26, s26, s58")
    e("v_xor_b32 v5, v4, v2", "v_lshlrev_b32 v5, 4, v5")
    e("v_mov_b32 v7, 81920", "v_mul_u32_u24 v6, v7, v3")
    e("v_add3_u32 v6, v6, v5, s61")
    e(f"v_mov_b32 v{XV}, v6")
    e(f"v_xor_b32 v7, 64, v6")
    e(f"v_add_u32 v{XV+1}, {8*81920-1024}, v7")
    e(f"v_add_u32 v{XV+2}, {16*81920-2048}, v6")
    e(f"v_add_u32 v{XV+3}, {24*81920-3072}, v7")
    e("s_lshl_b32 s62, s24, 4", "v_add_u32 v5, s62, v2", "v_mul_u32_u24 v5, 3072, v5")
    e("v_lshlrev_b32 v6, 1, v2", "v_xor_b32 v6, v6, v1", "v_lshlrev_b32 v6, 4, v6")
    e("s_lshl_b32 s62, s26, 8", "v_add3_u32 v5, v5, v6, s62")
    e(f"v_mov_b32 v{WV}, v5", "v_xor_b32 v6, 128, v5")
    e(f"v_add_u32 v{WV+1}, {8*3072-1024}, v6")
    e(f"v_add_u32 v{WV+2}, {4*3072-2048}, v5")
    e(f"v_add_u32 v{WV+3}, {12*3072-3072}, v6")
    e("s_waitcnt lgkmcnt(0)")
    e("s_mov_b32 s8, s40", "s_mov_b32 s9, s41", f"s_mov_b32 s10, {W1_SZ}")
    def g1_dma(m0x, m0w):
        g = []
        g.append([f"s_add_u32 m0, {m0x[0]}, {m0x[1]}", f"buffer_load_dwordx4 v{XV}, s[4:7], s28 offen lds"])
        for j in range(1, 4):
            g.append([f"buffer_load_dwordx4 v{XV+j}, s[4:7], s28 offen offset:{1024*j} lds"])
        g.append([f"s_add_u32 m0, {m0w[0]}, {m0w[1]}", f"buffer_load_dwordx4 v{WV}, s[8:11], s29 offen lds"])
        for j in range(1, 4):
            g.append([f"buffer_load_dwordx4 v{WV+j}, s[8:11], s29 offen offset:{1024*j} lds"])
        return g
    e("s_mov_b32 s28, 0", "s_mov_b32 s29, 0", "s_add_u32 s35, s34, 16384")
    for st in range(4):
        for g in g1_dma(("s34", st*32768), ("s35", st*32768)):
            if len(g) == 2: e(g[0], "s_nop 0", g[1])
            else: e(*g)
        e("s_add_u32 s28, s28, 128", "s_add_u32 s29, s29, 196608")
    e(f"v_lshrrev_b32 v5, 1, v1", "v_xor_b32 v5, v5, v2", "v_lshlrev_b32 v5, 4, v5")
    e(f"v_lshl_add_u32 v5, v1, 7, v5", f"v_add_u32 v{XA0}, s34, v5", f"v_xor_b32 v{XA1}, 64, v{XA0}")
    e("v_lshrrev_b32 v5, 2, v1", "v_and_b32 v6, 1, v2", "v_lshl_add_u32 v5, v6, 2, v5")
    e("v_lshrrev_b32 v6, 1, v2", "v_lshl_add_u32 v6, v6, 4, v5")
    e("v_lshlrev_b32 v6, 8, v6", "v_and_b32 v7, 3, v1", "v_lshl_add_u32 v6, v7, 3, v6", "v_add_u32 v6, 16384, v6")
    for t in range(8):
        e("s_lshl_b32 s62, s24, 1", f"s_add_u32 s62, s62, {t}", "s_and_b32 s62, s62, 7",
          "v_xor_b32 v7, s62, v5", f"v_lshl_add_u32 v{WA+t}, v7, 5, v6")
    for r in range(ACC, ONES): e(f"v_mov_b32 v{r}, 0")
    for r in range(ONES, ONES+4): e(f"v_mov_b32 v{r}, 0x3f803f80")
    lane_masks(a, T)
    def g1_mf(Ab, Bb):
        m = []
        for t in range(8):
            for mt in range(2):
                m.append(mfma(ACC + (t*2+mt)*4, Ab + 4*t, Bb + 4*mt))
            if t < 2: m.append(mfma(CS + 4*t, Ab + 4*t, ONES))
            if t in (2, 3): m.append(mfma(SUM + 4*(t-2), ONES, Bb + 4*(t-2)))
            if t in (4, 5): m.append(mfma(SQ + 4*(t-4), Bb + 4*(t-4), Bb + 4*(t-4)))
        return m
    def g1_rd(Ab, Bb, xa, kk):
        r = []
        for mt in range(2): r.append(f"ds_read_b128 {vr(Bb+4*mt,4)}, v{xa} offset:{2048*mt}")
        for t in range(8):
            for hf in range(2):
                r.append(f"ds_read_b64_tr_b16 {vr(Ab+4*t+2*hf,2)}, v{WA+t} offset:{kk*8192+hf*2048}")
        return r
    stamp(a, 3)
    e("s_waitcnt vmcnt(24)", "s_barrier")
    stamp(a, 4)
    e(*g1_rd(A0, B0, XA0, 0))
    e("s_waitcnt lgkmcnt(0)")
    dg = g1_dma(("s30", "s34"), ("s30", "s35"))
    def fix_m0(dg):
        out = []
        for g in dg:
            if len(g) == 2:
                out.append([g[0], "s_nop 0", g[1]])
            else: out.append(g)
        return out
    k1_loop(a, "G1", 32768, g1_mf(A0, B0), g1_mf(A1, B1), g1_rd(A1, B1, XA1, 1), g1_rd(A0, B0, XA0, 0),
            [WA+t for t in range(8)] + [XA0, XA1], fix_m0(dg), W1_SZ, 8, 196608)
    stamp(a, 5)
    e("s_nop 7", "s_nop 7")
    e("s_lshl_b32 s62, s24, 7", "s_add_u32 s62, s62, 131072")
    e(f"v_lshl_add_u32 v5, v2, 4, s62")
    e(f"ds_write_b128 v5, {vr(CS,4)}", f"ds_write_b128 v5, {vr(CS+4,4)} offset:64")
    MB, RS = [T+12, T+13], [T+14, T+15]
    stats_code(a, [SUM, SUM+4], [SQ, SQ+4], T, [(MB[0], RS[0]), (MB[1], RS[1])])
    for mt in range(2):
        e(f"v_mul_f32 v{RS[mt]}, {fhex(-LOG2E)}, v{RS[mt]}")
    e("s_waitcnt lgkmcnt(0)", "s_barrier")
    CSR = A0
    for t in range(8):
        e("s_lshl_b32 s62, s24, 1", f"s_add_u32 s62, s62, {t}", "s_and_b32 s62, s62, 7", "s_lshl_b32 s62, s62, 6", "s_add_u32 s62, s62, 131072",
          f"v_lshl_add_u32 v5, v2, 4, s62", f"ds_read_b128 {vr(CSR+4*t,4)}, v5")
    e(f"s_mov_b32 s14, {H_SZ}")
    e("s_and_b32 s62, s60, 31", "s_mul_i32 s62, s62, 48", "s_lshl_b32 s63, s26, 2", "s_add_u32 s62, s62, s63", "s_lshl_b32 s62, s62, 2",
      "s_lshr_b32 s63, s25, 3", "s_lshl_b32 s63, s63, 1", "s_add_u32 s62, s62, s63", "s_lshl_b32 s62, s62, 10")
    e("v_lshlrev_b32 v6, 4, v0")
    e("s_waitcnt lgkmcnt(0)")
    TT = A1
    for u in range(4):
        e(f"s_add_u32 s63, s24, {u}", "s_and_b32 s63, s63, 3", "s_lshl_b32 s63, s63, 12", "s_add_u32 s63, s63, s62")
        for mt in range(2):
            tb = TT + ((u*2+mt) & 1) * 20
            z = tb; ex = tb + 8; pk = tb + 16
            vals = [(ACC + ((2*u+h)*2+mt)*4 + r, CSR + (2*u+h)*4 + r) for h in range(2) for r in range(4)]
            for k, (ac, cs) in enumerate(vals): e(f"v_fma_f32 v{z+k}, -v{MB[mt]}, v{cs}, v{ac}")
            for k in range(8): e(f"v_mul_f32 v{z+k}, v{RS[mt]}, v{z+k}")
            for k in range(8): e(f"v_exp_f32 v{ex+k}, v{z+k}")
            for k in range(8): e(f"v_add_f32 v{ex+k}, 1.0, v{ex+k}")
            for k in range(8): e(f"v_rcp_f32 v{ex+k}, v{ex+k}")
            for k in range(8): e(f"v_mul_f32 v{z+k}, v{z+k}, v{ex+k}")
            for k in range(4): e(f"v_cvt_pk_bf16_f32 v{pk+k}, v{z+2*k}, v{z+2*k+1}")
            e(f"buffer_store_dwordx4 {vr(pk,4)}, v6, s[12:15], s63 offen offset:{1024*mt}")
    stamp(a, 6)
    stamp_out(a, 0)
    e("s_endpgm")
    a.lab("K1_dft")
    XV, DV, XA0, XA1, BA0, BA1 = 8, 12, 17, 18, 19, 20
    ACC, SUM, SQ, ONES = 24, 104, 112, 120
    A0, B0, A1, B1 = 124, 132, 172, 180
    WC = 220
    e("s_lshl_b32 s26, s59, 1", "s_add_u32 s26, s26, s58", "s_sub_u32 s26, s26, 6")
    e("v_xor_b32 v5, v4, v2", "v_lshlrev_b32 v5, 4, v5")
    e("v_lshrrev_b32 v6, 2, v3", "v_and_b32 v7, 3, v3", "v_lshl_add_u32 v6, v6, 3, v7")
    e("v_mov_b32 v7, 81920", "v_mul_u32_u24 v6, v7, v6")
    e("v_add3_u32 v6, v6, v5, s61")
    e(f"v_mov_b32 v{XV}, v6", "v_xor_b32 v7, 64, v6")
    e(f"v_add_u32 v{XV+1}, {16*81920-1024}, v7")
    e(f"v_add_u32 v{XV+2}, {4*81920-2048}, v6")
    e(f"v_add_u32 v{XV+3}, {20*81920-3072}, v7")
    e("s_and_b32 s62, s24, 1", "s_lshl_b32 s63, s62, 2", "v_add_u32 v5, s63, v2", "v_xor_b32 v5, v5, v4", "v_lshlrev_b32 v5, 4, v5")
    e("s_mul_i32 s63, s26, 80", "s_lshl_b32 s62, s62, 3", "s_add_u32 s63, s63, s62", "v_add_u32 v6, s63, v3")
    e("v_mov_b32 v7, 1280", "v_mad_u32_u24 v21, v6, v7, v5")
    for j in range(1, 5):
        e(f"v_add_u32 v{DV+j}, {16*1280*j - (1024*j if j < 4 else 0)}, v21")
    e("v_cmp_eq_u32 vcc, 0, v6", f"v_add_u32 v22, {320*1280}, v21", "s_nop 0", f"v_cndmask_b32 v{DV}, v21, v22, vcc")
    e("s_waitcnt lgkmcnt(0)")
    e("v_lshlrev_b32 v5, 18, v1", "v_lshl_add_u32 v5, v2, 4, v5", f"v_add_u32 v6, {16*262144}, v5")
    e(f"global_load_dwordx4 {vr(WC,4)}, v5, s[44:45]", f"global_load_dwordx4 {vr(WC+4,4)}, v6, s[44:45]")
    e(f"global_load_dwordx4 {vr(WC+8,4)}, v5, s[46:47]", f"global_load_dwordx4 {vr(WC+12,4)}, v6, s[46:47]")
    e("s_cmp_ge_u32 s24, 2", "s_cselect_b32 s8, s38, s36", "s_cselect_b32 s9, s39, s37", f"s_mov_b32 s10, {WD_SZ}")
    def dft_dma(base0, base1):
        g = []
        g.append([f"s_add_u32 m0, {base0[0]}, {base0[1]}", "s_nop 0", f"buffer_load_dwordx4 v{XV}, s[4:7], s28 offen lds"])
        for j in range(1, 4):
            g.append([f"buffer_load_dwordx4 v{XV+j}, s[4:7], s28 offen offset:{1024*j} lds"])
        g.append([f"s_add_u32 m0, {base1[0]}, {base1[1]}", "s_nop 0", f"buffer_load_dwordx4 v{DV}, s[8:11], s28 offen lds"])
        for j in range(1, 4):
            g.append([f"buffer_load_dwordx4 v{DV+j}, s[8:11], s28 offen offset:{1024*j} lds"])
        g.append(["s_add_u32 m0, m0, 4096", "s_nop 0", f"buffer_load_dwordx4 v{DV+4}, s[8:11], s28 offen lds"])
        return g
    e("s_mov_b32 s28, 0", "s_mul_i32 s35, s24, 5120", "s_add_u32 s35, s35, 16384")
    for st in range(4):
        for g in dft_dma(("s34", st*36864), ("s35", st*36864)): e(*g)
        e("s_add_u32 s28, s28, 128")
    e(f"v_lshrrev_b32 v5, 1, v1", "v_xor_b32 v5, v5, v2", "v_lshlrev_b32 v5, 4, v5")
    e(f"v_lshl_add_u32 v6, v1, 7, v5", f"v_add_u32 v{XA0}, s34, v6", f"v_xor_b32 v{XA1}, 64, v{XA0}")
    e("v_lshrrev_b32 v6, 3, v1", "v_mul_u32_u24 v6, 5120, v6", "v_and_b32 v7, 7, v1", "v_lshl_add_u32 v6, v7, 7, v6")
    e(f"v_add_u32 v6, v6, v5", f"v_add_u32 v{BA0}, 16384, v6", f"v_xor_b32 v{BA1}, 64, v{BA0}")
    for r in range(ACC, ONES): e(f"v_mov_b32 v{r}, 0")
    for r in range(ONES, ONES+4): e(f"v_mov_b32 v{r}, 0x3f803f80")
    T = 236
    lane_masks(a, T)
    def dacc(p, part, mt): return ACC + ((p*2+part)*2+mt)*4
    def dft_mf(Ab, Bb):
        m = []
        for p in range(5):
            for part in range(2):
                for mt in range(2):
                    m.append(mfma(dacc(p, part, mt), Ab + 4*mt, Bb + (part*5+p)*4))
            if p < 2: m.append(mfma(SUM + 4*p, ONES, Ab + 4*p))
            if p in (2, 3): m.append(mfma(SQ + 4*(p-2), Ab + 4*(p-2), Ab + 4*(p-2)))
        return m
    def dft_rd(Ab, Bb, xa, ba):
        r = []
        for mt in range(2): r.append(f"ds_read_b128 {vr(Ab+4*mt,4)}, v{xa} offset:{2048*mt}")
        for p in range(5):
            for part in range(2):
                r.append(f"ds_read_b128 {vr(Bb+(part*5+p)*4,4)}, v{ba} offset:{part*10240+p*1024}")
        return r
    stamp(a, 3)
    e("s_waitcnt vmcnt(27)", "s_barrier")
    stamp(a, 4)
    e(*dft_rd(A0, B0, XA0, BA0))
    e("s_waitcnt lgkmcnt(0)")
    k1_loop(a, "DF", 36864, dft_mf(A0, B0), dft_mf(A1, B1), dft_rd(A1, B1, XA1, BA1), dft_rd(A0, B0, XA0, BA0),
            [XA0, XA1, BA0, BA1], dft_dma(("s30", "s34"), ("s30", "s35")), WD_SZ, 9, 0)
    stamp(a, 5)
    e("s_nop 7", "s_nop 7")
    MB, RS = [T+12, T+13], [T+14, T+15]
    stats_code(a, [SUM, SUM+4], [SQ, SQ+4], T, [(MB[0], RS[0]), (MB[1], RS[1])])
    RR = A0
    e("v_lshlrev_b32 v5, 4, v2")
    for mt in range(2):
        for r in range(4):
            e(f"v_add_u32 v6, {4*r}, v5", f"ds_bpermute_b32 v{RR+mt*4+r}, v6, v{RS[mt]}")
    for k in range(8): e(f"v_xor_b32 v{WC+16+k}, 0x80008000, v{WC+8+k}")
    e("s_waitcnt lgkmcnt(0)")
    PK = B0
    TM = A1
    for p in range(5):
        for part in range(2):
            for mt in range(2):
                ac = dacc(p, part, mt)
                for r in range(4): e(f"v_mul_f32 v{ac+r}, v{ac+r}, v{RR+mt*4+r}")
            for mt in range(2):
                ac = dacc(p, part, mt)
                for h in range(2): e(f"v_cvt_pk_bf16_f32 v{PK+8*p+4*part+2*mt+h}, v{ac+2*h}, v{ac+2*h+1}")
    e("s_nop 1")
    def ud(p, nt, c): return ACC + p*16 + nt*8 + 4*c
    for p in range(5):
        aa, bb = PK+8*p, PK+8*p+4
        for nt in range(2):
            e(mfma0(ud(p, nt, 0), aa, WC + 4*nt))
            e(mfma0(ud(p, nt, 1), aa, WC + 8 + 4*nt))
        for nt in range(2):
            e(mfma(ud(p, nt, 0), bb, WC + 16 + 4*nt))
            e(mfma(ud(p, nt, 1), bb, WC + 4*nt))
    e(f"s_mov_b32 s14, {U_SZ}", f"s_add_u32 s12, s12, {U_OFF}", "s_addc_u32 s13, s13, 0")
    e("s_mul_i32 s62, s60, 80", "s_mul_i32 s63, s26, 20", "s_add_u32 s62, s62, s63", "s_lshl_b32 s62, s62, 4")
    e("v_mov_b32 v7, 81920", "v_mul_u32_u24 v5, v7, v1", "v_lshl_add_u32 v5, v2, 4, v5", f"v_add_u32 v6, {16*81920}, v5")
    e("s_nop 7")
    k = 0
    for p in range(5):
        for nt in range(2):
            tb = A1 + (k % 4) * 4; k += 1
            re, im = ud(p, nt, 0), ud(p, nt, 1)
            e(f"v_cvt_pk_bf16_f32 v{tb}, v{re}, v{re+1}", f"v_cvt_pk_bf16_f32 v{tb+1}, v{re+2}, v{re+3}",
              f"v_cvt_pk_bf16_f32 v{tb+2}, v{im}, v{im+1}", f"v_cvt_pk_bf16_f32 v{tb+3}, v{im+2}, v{im+3}")
            e(f"buffer_store_dwordx4 {vr(tb,4)}, v{5+nt}, s[12:15], s62 offen offset:{64*p}")
    stamp(a, 6)
    stamp_out(a, 0)
    a.lab("K1_end")
    e("s_endpgm")


DBG = None
def gen_k2(a):
    e = a.e
    STG, UB, YB, RB = 0, 102400, 131072, 0
    NS = 5
    HR = 7
    HV, WV, TRA, UA, XO = 251, 8, 13, 14, 15
    Y, XR, ACC, HB, T = 16, 40, 52, 132, 244
    e("s_cmp_ge_u32 s2, 256", "s_cbranch_scc1 K2_end")
    stamp(a, 0, True); stamp(a, 2)
    e("s_load_dwordx2 s[4:5], s[0:1], 80")
    e("s_load_dwordx2 s[8:9], s[0:1], 56")
    e("s_load_dwordx2 s[16:17], s[0:1], 0")
    e("s_load_dwordx2 s[20:21], s[0:1], 64")
    e("s_load_dwordx4 s[44:47], s[0:1], 8")
    e("v_lshrrev_b32 v1, 6, v0", "v_and_b32 v0, 63, v0")
    e("v_readfirstlane_b32 s24, v1")
    e("s_and_b32 s48, s2, 7", "s_lshr_b32 s49, s2, 3", "s_lshr_b32 s56, s48, 1", "s_lshl_b32 s56, s56, 3",
      "s_and_b32 s57, s49, 7", "s_add_u32 s25, s56, s57",
      "s_and_b32 s56, s48, 1", "s_lshl_b32 s56, s56, 2", "s_lshr_b32 s57, s49, 3", "s_add_u32 s26, s56, s57")
    e("v_and_b32 v1, 15, v0", "v_lshrrev_b32 v2, 4, v0")
    for (w2i, sz) in ((6, H_SZ), (10, W2_SZ), (14, U_SZ), (18, X_SZ), (22, X_SZ)):
        e(f"s_mov_b32 s{w2i}, {sz}", f"s_mov_b32 s{w2i+1}, {SRD3}")
    if 'noh' in OPT: e("s_mov_b32 s6, 0")
    if 'now' in OPT: e("s_mov_b32 s10, 0")
    e("s_sub_u32 s56, 32, s25", "s_and_b32 s56, s56, 31", "s_mul_i32 s57, s26, 20", "s_sub_u32 s58, 140, s57",
      "s_cmp_ge_u32 s26, 4", "s_cselect_b32 s27, 1, 0", "s_cselect_b32 s28, s56, s25", "s_cselect_b32 s29, s58, s57")
    e("s_and_b32 s56, s24, 1", "s_lshl_b32 s56, s56, 10", "s_lshr_b32 s57, s24, 1", "s_lshl_b32 s57, s57, 5", "s_add_u32 s30, s56, s57", "s_add_u32 s30, s30, s25")
    e("s_waitcnt lgkmcnt(0)")
    lstamp(a, 1)
    e("s_mov_b32 s12, s4", "s_mov_b32 s13, s5", f"s_add_u32 s12, s12, {U_OFF}", "s_addc_u32 s13, s13, 0")
    WB = ACC
    e("v_lshlrev_b32 v5, 6, v1", "v_add_u32 v5, s30, v5", "v_lshlrev_b32 v5, 12, v5",
      "v_lshrrev_b32 v6, 1, v2", "v_lshl_add_u32 v5, v6, 4, v5")
    e("v_and_b32 v6, 1, v2", "v_cmp_eq_u32 vcc, 0, v6", "s_mov_b64 s[58:59], exec", "s_and_b64 exec, s[58:59], vcc")
    for k in range(4): e(f"global_load_dwordx4 {vr(WB+4*k,4)}, v5, s[44:45] offset:{32*k}")
    e("s_andn2_b64 exec, s[58:59], vcc")
    for k in range(4): e(f"global_load_dwordx4 {vr(WB+4*k,4)}, v5, s[46:47] offset:{32*k}")
    e("s_mov_b64 exec, s[58:59]")
    lstamp(a, 2)
    e("v_mov_b32 v7, 81920", f"v_mul_u32_u24 v{XO}, v7, v1", f"v_lshl_add_u32 v{XO}, v2, 3, v{XO}")
    e("s_mul_i32 s31, s30, 1280", "s_mul_i32 s56, s26, 160", "s_add_u32 s31, s31, s56")
    for nt in range(5): e(f"buffer_load_dwordx2 {vr(XR+2*nt,2)}, v{XO}, s[16:19], s31 offen offset:{32*nt}")
    lstamp(a, 3)
    e("s_mul_i32 s32, s28, 81920")
    e("s_mul_i32 s56, s24, 448", "v_add_u32 v5, s56, v0")
    e("s_mul_i32 s57, s24, 7168", f"s_add_u32 s57, s57, {UB}")
    for n in range(7):
        e(f"v_add_u32 v6, {64*n}, v5", "v_mul_u32_u24 v7, 2341, v6", "v_lshrrev_b32 v7, 16, v7",
          "v_mul_u32_u24 v8, 28, v7", "v_sub_u32 v6, v6, v8", "v_add_u32 v6, s29, v6",
          "v_subrev_u32 v8, 80, v6", "v_cmp_le_u32 vcc, 80, v6", "v_lshlrev_b32 v9, 8, v7", "v_cndmask_b32 v6, v6, v8, vcc",
          "v_lshl_add_u32 v9, v7, 10, v9", f"s_add_u32 m0, s57, {1024*n}", f"v_lshl_add_u32 v{T+n}, v6, 4, v9",
          f"buffer_load_dwordx4 v{T+n}, s[12:15], s32 offen lds")
    lstamp(a, 4)
    e("v_mov_b32 v3, 205")
    for jj in range(5):
        e(f"v_add_u32 v5, {64*jj}, v0", "v_mul_u32_u24 v6, v3, v5", "v_lshrrev_b32 v6, 11, v6",
          "v_mul_u32_u24 v7, 10, v6", "v_sub_u32 v5, v5, v7", "v_mov_b32 v7, 1280", "v_mul_u32_u24 v6, v7, v6", "v_lshl_add_u32 v5, v5, 4, v6")
        e(f"v_subrev_u32 v{WV+jj}, {1024*jj if jj < 4 else 0}, v5")
    for mu in range(4):
        e(f"s_add_u32 s56, s24, {mu}", "s_and_b32 s56, s56, 3", "s_lshl_b32 s56, s56, 10", f"v_lshl_add_u32 v{HV+mu}, v0, 4, s56")
    e("s_mul_i32 s33, s24, 491520", "s_mul_i32 s56, s26, 160", "s_add_u32 s33, s33, s56")
    e("s_mul_i32 s34, s25, 48", "s_mul_i32 s56, s24, 12", "s_add_u32 s34, s34, s56", "s_lshl_b32 s34, s34, 12")
    e(f"s_mul_i32 s35, s24, {NS*5120}")
    def issue(kk):
        g = []
        sl = kk % NS
        g.append([f"s_add_u32 m0, s35, {sl*5120}", "s_nop 0", f"buffer_load_dwordx4 v{WV}, s[8:11], s33 offen lds"])
        for jj in range(1, 4): g.append([f"buffer_load_dwordx4 v{WV+jj}, s[8:11], s33 offen offset:{1024*jj} lds"])
        g.append([f"s_add_u32 m0, s35, {sl*5120+4096}", "s_nop 0", f"buffer_load_dwordx4 v{WV+4}, s[8:11], s33 offen lds", "s_add_u32 s33, s33, 40960"])
        hb = HB + (kk % HR)*16
        for mu in range(4): g.append([f"buffer_load_dwordx4 {vr(hb+4*mu,4)}, v{HV+mu}, s[4:7], s34 offen"])
        g[-1].append("s_add_u32 s34, s34, 4096")
        return g
    lstamp(a, 5)
    for kk in range(NS):
        for g in issue(kk): e(*g)
        lstamp(a, 6+kk)
    e("v_lshrrev_b32 v5, 2, v1", "v_lshl_add_u32 v5, v2, 2, v5", "v_mul_u32_u24 v5, 160, v5", "v_and_b32 v6, 3, v1", "v_lshl_add_u32 v5, v6, 3, v5",
      f"v_add_u32 v{TRA}, s35, v5")
    e("v_lshrrev_b32 v5, 2, v1", "v_lshrrev_b32 v6, 1, v2", "v_lshl_add_u32 v5, v6, 3, v5", "v_mul_u32_u24 v5, 448, v5",
      "v_and_b32 v6, 3, v1", "v_lshl_add_u32 v5, v6, 4, v5", "v_and_b32 v6, 1, v2", "v_lshl_add_u32 v5, v6, 3, v5", f"v_add_u32 v{UA}, {UB}, v5")
    e("s_cmp_eq_u32 s27, 0", "s_cselect_b32 s56, 0x80008000, 0", "v_and_b32 v6, 1, v2", "v_mul_lo_u32 v6, v6, s56")
    stamp(a, 3)
    e(f"s_waitcnt vmcnt({9*NS})", "s_barrier")
    stamp(a, 4)
    for k in range(16): e(f"v_xor_b32 v{WB+k}, v6, v{WB+k}")
    UAb = ACC + 16
    def urd(k):
        r = []
        for t in range(6):
            for hf in range(2):
                r.append(f"ds_read_b64_tr_b16 {vr(UAb+(k&1)*24+4*t+2*hf,2)}, v{UA} offset:{k*7168+hf*1792+t*64}")
        return r
    e(*urd(0))
    for k in range(4):
        e("s_waitcnt lgkmcnt(0)")
        m = [(mfma0 if k == 0 else mfma)(Y+4*t, UAb+(k&1)*24+4*t, WB+4*k) for t in range(6)]
        fill = [[x] for x in urd(k+1)] if k < 3 else []
        e(*interleave(m, fill, per=2))
    e("s_nop 7", "s_nop 1")
    e("s_cmp_eq_u32 s27, 0", "s_cbranch_scc1 K2_direct")
    e(f"s_mul_i32 s56, s24, 7424", f"s_add_u32 s56, s56, {YB}", "v_mov_b32 v7, 464", "v_mul_u32_u24 v5, v7, v1", "v_add_u32 v5, s56, v5",
      "v_lshlrev_b32 v6, 4, v2", "v_sub_u32 v7, v5, v6", "v_add_u32 v7, 52, v7", "v_add_u32 v5, v5, v6")
    for t in range(6):
        for r in (0, 2):
            o0 = (5-t)*16 + 3 - r
            e(f"ds_write2_b32 v7, v{Y+4*t+r}, v{Y+4*t+r+1} offset0:{o0} offset1:{o0-1}")
    e("s_waitcnt lgkmcnt(0)")
    for nt in range(5): e(f"ds_read_b128 {vr(Y+4*nt,4)}, v5 offset:{64+64*nt}")
    e("s_branch K2_ydone")
    a.lab("K2_direct")
    e("s_cmp_eq_u32 s26, 0", "s_cselect_b64 s[58:59], -1, 0", "v_cmp_eq_u32 vcc, 0, v2", "s_and_b64 vcc, vcc, s[58:59]", "s_nop 1", f"v_cndmask_b32 v{Y}, v{Y}, 0, vcc" if False else f"v_cndmask_b32_e64 v{Y}, v{Y}, 0, vcc")
    a.lab("K2_ydone")
    def trd(kk):
        r = []
        sl = kk % NS
        for nt in range(5):
            for hf in range(2):
                r.append(f"ds_read_b64_tr_b16 {ar(20*kk+4*nt+2*hf,2)}, v{TRA} offset:{sl*5120+hf*2560+nt*32}")
        return r
    e(f"s_waitcnt vmcnt({9*(NS-1)})")
    stamp(a, 5)
    e(*trd(0))
    e("s_waitcnt lgkmcnt(0)")
    for g in issue(NS): e(*g)
    issued = NS
    for kk in range(12):
        if kk+1 <= 11:
            e(f"s_waitcnt vmcnt({9*(issued-(kk+1))})")
        hb = HB + (kk % HR)*16
        m = []
        for nt in range(5):
            for mu in range(4):
                d = ACC + (mu*5+nt)*4
                m.append((mfma0 if kk == 0 else mfma)(d, 20*kk+4*nt, hb+4*mu, aa=True))
        fill = [[x] for x in trd(kk+1)] if kk < 11 else []
        e(*interleave(m, fill, per=1))
        if STAMP: e("s_memtime s[66:67]")
        e("s_waitcnt lgkmcnt(0)")
        if STAMP and kk < 15 and 'pro' not in OPT: e(f"v_writelane_b32 v255, s66, {kk+1}")
        if issued < 11:
            issued += 1
            for g in issue(issued): e(*g)
    stamp(a, 6)
    e("s_nop 7", "s_barrier")
    e("v_mov_b32 v7, 336", "v_mul_u32_u24 v5, v7, v1", "v_lshl_add_u32 v5, v2, 4, v5")
    for mu in range(1, 4):
        e(f"s_add_u32 s56, s24, {mu}", "s_and_b32 s56, s56, 3", "s_mul_i32 s56, s56, 3", f"s_add_u32 s56, s56, {mu-1}", f"s_mul_i32 s56, s56, {16*336}",
          f"v_add_u32 v6, s56, v5")
        for nt in range(5): e(f"ds_write_b128 v6, {vr(ACC+(mu*5+nt)*4,4)} offset:{RB+64*nt}")
    e(f"s_mul_i32 s56, s24, {3*16*336}", "v_add_u32 v6, s56, v5")
    e("s_waitcnt lgkmcnt(0)", "s_barrier")
    P = HB
    for i in range(3):
        for nt in range(5): e(f"ds_read_b128 {vr(P+(i*5+nt)*4,4)}, v6 offset:{RB+i*16*336+64*nt}")
    e("s_waitcnt lgkmcnt(0)")
    for nt in range(5):
        o = ACC + nt*4
        for r in range(4): e(f"v_add_f32 v{o+r}, v{o+r}, v{P+nt*4+r}")
        for r in range(4): e(f"v_add_f32 v{P+20+nt*4+r}, v{P+20+nt*4+r}, v{P+40+nt*4+r}")
        for r in range(4): e(f"v_add_f32 v{o+r}, v{o+r}, v{P+20+nt*4+r}")
    for nt in range(5):
        o = ACC + nt*4; ex = P + 60 + nt*4; xx = P + 80 + nt*4; pk = P + 100 + nt*2
        if DBG == 'o':
            for r in range(4): e(f"v_mov_b32 v{T+r}, v{o+r}")
        for r in range(4): e(f"v_exp_f32 v{ex+r}, v{o+r}")
        e(f"v_lshlrev_b32 v{xx}, 16, v{XR+2*nt}", f"v_and_b32 v{xx+1}, 0xffff0000, v{XR+2*nt}",
          f"v_lshlrev_b32 v{xx+2}, 16, v{XR+2*nt+1}", f"v_and_b32 v{xx+3}, 0xffff0000, v{XR+2*nt+1}")
        for r in range(4): e(f"v_add_f32 v{ex+r}, 1.0, v{ex+r}")
        for r in range(4): e(f"v_rcp_f32 v{ex+r}, v{ex+r}")
        for r in range(4): e(f"v_mul_f32 v{o+r}, v{o+r}, v{Y+4*nt+r}")
        for r in range(4): e(f"v_mul_f32 v{o+r}, v{o+r}, v{ex+r}")
        for r in range(4): e(f"v_fmamk_f32 v{xx+r}, v{o+r}, {fhex(-LN2)}, v{xx+r}")
        if DBG == 'y':
            for r in range(4): e(f"v_mov_b32 v{xx+r}, v{Y+4*nt+r}")
        if DBG == 'o':
            for r in range(4): e(f"v_mov_b32 v{xx+r}, v{T+r}")
        e(f"v_cvt_pk_bf16_f32 v{pk}, v{xx}, v{xx+1}", f"v_cvt_pk_bf16_f32 v{pk+1}, v{xx+2}, v{xx+3}")
        e(f"buffer_store_dwordx2 {vr(pk,2)}, v{XO}, s[20:23], s31 offen offset:{32*nt}")
    stamp_out(a, 1)
    a.lab("K2_end")
    e("s_endpgm")

def kernel_desc(name, nv=256, acc=256, total=None):
    return f""".amdhsa_kernel {name}
  .amdhsa_next_free_vgpr {total or nv}
  .amdhsa_next_free_sgpr 102
  .amdhsa_accum_offset {acc}
  .amdhsa_group_segment_fixed_size 0
  .amdhsa_kernarg_size 88
  .amdhsa_user_sgpr_count 2
  .amdhsa_user_sgpr_kernarg_segment_ptr 1
  .amdhsa_system_sgpr_workgroup_id_x 1
.end_amdhsa_kernel
"""

def build(kernels, order=None):
    out = HEADER
    info = {k[0]: k for k in kernels}
    for lab in (order or [k[0] for k in kernels]):
        out += f"; @launch kernel={lab} grid=(256,1,1) block=(256,1,1) lds={info[lab][2]}\n"
    out += '.amdgcn_target "amdgcn-amd-amdhsa--gfx950"\n.text\n'
    for (lab, fn, lds, tot) in kernels:
        a = A(); fn(a)
        out += f".globl {lab}\n.p2align 8\n.type {lab},@function\n{lab}:\n" + a.text()
    out += '.section .rodata,"a"\n'
    for (lab, fn, lds, tot) in kernels:
        out += ".p2align 6\n" + kernel_desc(lab, 256, 256, tot)
    return out

def gen_k0(a):
    a.e("s_endpgm")

if __name__ == "__main__":
    which = sys.argv[1]
    if len(sys.argv) > 3:
        for o in sys.argv[3].split(','):
            if o == 'st': STAMP = True
            elif o in ('y', 'o'): DBG = o
            else: OPT.add(o)
    out = sys.argv[2]
    if which == "k1":
        txt = build([("k1_kernel", gen_k1, 147456, 256)])
    if which == "k12":
        txt = build([("k1_kernel", gen_k1, 147456, 256), ("k2_kernel", gen_k2, 160768, 512)])
    K0 = ("k0_kernel", gen_k0, 0, 256); K1 = ("k1_kernel", gen_k1, 147456, 256); K2 = ("k2_kernel", gen_k2, 160768, 512)
    if which == "k112": txt = build([K1, K2], ["k1_kernel", "k1_kernel", "k2_kernel"])
    if which == "k122": txt = build([K1, K2], ["k1_kernel", "k2_kernel", "k2_kernel"])
    if which == "k012": txt = build([K0, K1, K2], ["k0_kernel", "k1_kernel", "k2_kernel"])
    if which == "k1212": txt = build([K1, K2], ["k1_kernel", "k2_kernel", "k1_kernel", "k2_kernel"])
    open(out, "w").write(txt)
```

```python
from asmlib import *
from gen import LN2, H_SZ, U_OFF, U_SZ, SRD3
STAMP = False
OPT = set()
FL = 0xB00000; FL_H = FL; FL_U = FL + 4096; EPO = FL + 16384
SPIN = 200000
NONCE = "s65"
K2_SETUP_VM = 8
HV, UA, XO, PH, PU = 8, 12, 13, 14, 15
Y, ACC, HB, US6 = 16, 40, 120, 248
PDH, PDU = 252, 253
UB, YB, RB = 102400, 131072, 0
def ust(n): return Y + 4*n if n < 6 else US6

def k2_setup(a):
    e = a.e
    e("s_sub_u32 s56, 32, s90", "s_and_b32 s56, s56, 31", "s_mul_i32 s57, s91, 20", "s_sub_u32 s58, 140, s57",
      "s_cmp_ge_u32 s91, 4", "s_cselect_b32 s27, 1, 0", "s_cselect_b32 s28, s56, s90", "s_cselect_b32 s29, s58, s57")
    e("s_and_b32 s56, s24, 1", "s_lshl_b32 s56, s56, 10", "s_lshr_b32 s57, s24, 1", "s_lshl_b32 s57, s57, 5", "s_add_u32 s30, s56, s57", "s_add_u32 s30, s30, s90")
    e("v_lshlrev_b32 v5, 6, v1", "v_add_u32 v5, s30, v5", "v_lshlrev_b32 v5, 12, v5",
      "v_lshrrev_b32 v6, 1, v2", "v_lshl_add_u32 v5, v6, 4, v5")
    e("v_and_b32 v6, 1, v2", "v_cmp_eq_u32 vcc, 0, v6", "s_nop 1", "s_mov_b64 exec, vcc")
    for k in range(4): e(f"global_load_dwordx4 {ar(240+4*k,4)}, v5, s[38:39] offset:{32*k}")
    e("s_not_b64 exec, exec")
    for k in range(4): e(f"global_load_dwordx4 {ar(240+4*k,4)}, v5, s[40:41] offset:{32*k}")
    e("s_mov_b64 exec, -1")
    e("s_mov_b32 s4, s86", "s_mov_b32 s5, s87", f"s_mov_b32 s6, {H_SZ}")
    e("s_mov_b32 s8, s86", "s_mov_b32 s9, s87", f"s_add_u32 s8, s8, {U_OFF}", "s_addc_u32 s9, s9, 0", f"s_mov_b32 s10, {U_SZ}")
    e("v_mov_b32 v7, 81920", f"v_mul_u32_u24 v{XO}, v7, v1", f"v_lshl_add_u32 v{XO}, v2, 3, v{XO}")
    e("s_mul_i32 s31, s30, 1280", "s_mul_i32 s56, s91, 160", "s_add_u32 s31, s31, s56")
    e("s_mul_i32 s32, s28, 81920")
    e("s_mul_i32 s56, s24, 448", "v_add_u32 v5, s56, v0")
    for n in range(7):
        e(f"v_add_u32 v6, {64*n}, v5", "v_mul_u32_u24 v7, 2341, v6", "v_lshrrev_b32 v7, 16, v7",
          "v_mul_u32_u24 v3, 28, v7", "v_sub_u32 v6, v6, v3", "v_add_u32 v6, s29, v6",
          "v_subrev_u32 v3, 80, v6", "v_cmp_le_u32 vcc, 80, v6", "v_lshlrev_b32 v4, 8, v7", "v_cndmask_b32 v6, v6, v3, vcc",
          "v_lshl_add_u32 v4, v7, 10, v4", f"v_lshl_add_u32 v{ust(n)}, v6, 4, v4")
    for mu in range(4):
        e(f"s_add_u32 s56, s24, {mu}", "s_and_b32 s56, s56, 3", "s_lshl_b32 s56, s56, 10", f"v_lshl_add_u32 v{HV+mu}, v0, 4, s56")
    e("s_mul_i32 s34, s90, 48", "s_mul_i32 s56, s24, 12", "s_add_u32 s34, s34, s56", "s_lshl_b32 s34, s34, 12")
    e("v_lshrrev_b32 v5, 2, v1", "v_lshrrev_b32 v6, 1, v2", "v_lshl_add_u32 v5, v6, 3, v5", "v_mul_u32_u24 v5, 448, v5",
      "v_and_b32 v6, 3, v1", "v_lshl_add_u32 v5, v6, 4, v5", "v_and_b32 v6, 1, v2", "v_lshl_add_u32 v5, v6, 3, v5", f"v_add_u32 v{UA}, {UB}, v5")
    e("s_lshr_b32 s56, s90, 2", "s_lshl_b32 s56, s56, 9", "s_lshl_b32 s57, s24, 7", "s_add_u32 s56, s56, s57", f"s_add_u32 s56, s56, {FL_H}",
      f"v_lshl_add_u32 v{PH}, v0, 4, s56", f"s_mov_b32 s56, {FL_U}", f"v_lshl_add_u32 v{PU}, v0, 4, s56")
    e("s_cmp_eq_u32 s27, 0", "s_cselect_b32 s33, 0x80008000, 0")
    e("s_or_b32 s92, s2, s24")

class VQ:
    def __init__(s): s.q = []
    def add(s, tag): s.q.append(tag)
    def wait(s, tag):
        idx = max(i for i, t in enumerate(s.q) if t == tag)
        return f"s_waitcnt vmcnt({len(s.q) - 1 - idx})"

def gen_k2f(a, ools, stamp, stamp_out):
    e = a.e
    e("s_mov_b32 s62, 0", "s_mov_b64 exec, 0x3f")
    a.lab("K2_hp")
    e(f"global_load_dword v{PDH}, v{PH}, s[86:87] sc1", "s_waitcnt vmcnt(0)", f"v_cmp_ne_u32 vcc, {NONCE}, v{PDH}", "s_add_u32 s62, s62, 1", "s_nop 1",
      "s_cbranch_vccz K2_hpd", f"s_cmp_lt_u32 s62, {SPIN}", "s_cbranch_scc1 K2_hp")
    a.lab("K2_hpd")
    e("s_mov_b64 exec, -1")
    stamp(a, 7)
    q = VQ()
    def hload(k):
        g = []
        hb = HB + (k % 8)*16
        for mu in range(4):
            g.append([f"buffer_load_dwordx4 {vr(hb+4*mu,4)}, v{HV+mu}, s[4:7], s34 offen sc1"]); q.add(f"h{k}")
        g[-1].append("s_add_u32 s34, s34, 4096")
        return g
    for k in range(8):
        for g in hload(k): e(*g)
        if k == 3:
            e(f"global_load_dword v{PDU}, v{PU}, s[86:87] sc1"); q.add("uf")
    stamp(a, 8)
    def smf(kk):
        hb = HB + (kk % 8)*16; m = []
        for nt in range(5):
            for mu in range(4):
                d = ACC + (mu*5+nt)*4
                m.append((mfma0 if kk == 0 else mfma)(d, 20*kk+4*nt, hb+4*mu, aa=True))
        return m
    UAb = HB + 64
    def urd(k):
        r = []
        for t in range(6):
            for hf in range(2):
                r.append(f"ds_read_b64_tr_b16 {vr(UAb+(k&1)*24+4*t+2*hf,2)}, v{UA} offset:{k*7168+hf*1792+t*64}")
        return r
    def ymf(k):
        m = []
        for t in range(6):
            c = "0" if k == 0 else vr(Y+4*t, 4)
            m.append(f"v_mfma_f32_16x16x32_bf16 {vr(Y+4*t,4)}, {vr(UAb+(k&1)*24+4*t,4)}, {ar(240+4*k,4)}, {c}")
        return m
    XR = HB + 7*16
    for kk in range(9):
        e(q.wait(f"h{kk}"))
        fill = []
        if 1 <= kk <= 4: fill = hload(kk+7)
        if kk == 4:
            e(f"v_cmp_ne_u32 vcc, {NONCE}, v{PDU}", "s_nop 2", "s_cbranch_vccnz K2_usp")
            a.lab("K2_uok")
            for n in range(7):
                fill.append([f"buffer_load_dwordx4 {vr(ust(n),4)}, v{ust(n)}, s[8:11], s32 offen sc1"]); q.add("u")
        if kk == 8:
            for nt in range(5):
                fill.append([f"buffer_load_dwordx2 {vr(XR+2*nt,2)}, v{XO}, s[12:15], s31 offen offset:{32*nt}"]); q.add("x")
        e(*interleave(smf(kk), fill, start=1, per=1))
        if kk == 7:
            e("s_mov_b32 s12, s36", "s_mov_b32 s13, s37", f"s_mov_b32 s14, {2048*1280}")
    def usp(b):
        b.lab("K2_usp")
        b.e("s_mov_b32 s62, 0")
        b.lab("K2_usp1")
        b.e(f"global_load_dword v{PDU}, v{PU}, s[86:87] sc1", "s_waitcnt vmcnt(0)", f"v_cmp_ne_u32 vcc, {NONCE}, v{PDU}", "s_add_u32 s62, s62, 1", "s_nop 1",
            "s_cbranch_vccz K2_uok", f"s_cmp_lt_u32 s62, {SPIN}", "s_cbranch_scc1 K2_usp1", "s_branch K2_uok")
    ools.append(usp)
    stamp(a, 9)
    e("s_cmp_lg_u32 s92, 0", "s_cbranch_scc1 K2_noep")
    e(f"s_mov_b32 s56, {FL_H}", "v_lshl_add_u32 v5, v0, 4, s56")
    for n in range(4): e(f"global_load_dword v{242+n}, v5, s[86:87] offset:{1024*n} sc1")
    e(f"global_load_dword v246, v{PU}, s[86:87] sc1")
    a.lab("K2_noep")
    e("s_mul_i32 s57, s24, 7168", f"s_add_u32 s57, s57, {UB}", "v_lshl_add_u32 v3, v0, 4, s57")
    e(q.wait("u"))
    for n in range(7):
        e(f"v_xor_b32 v{ust(n)+2}, s33, v{ust(n)+2}", f"v_xor_b32 v{ust(n)+3}, s33, v{ust(n)+3}", f"ds_write_b128 v3, {vr(ust(n),4)} offset:{1024*n}")
    e("s_waitcnt lgkmcnt(0)", "s_barrier")
    e(q.wait("h9"))
    e(*interleave(smf(9), [[x] for x in urd(0)], start=0, per=1))
    e("s_waitcnt lgkmcnt(0)", q.wait("h10"))
    e(*interleave(ymf(0) + smf(10), [[x] for x in urd(1)], start=6, per=1))
    e("s_waitcnt lgkmcnt(0)", q.wait("h11"))
    e(*interleave(ymf(1) + smf(11), [[x] for x in urd(2)], start=6, per=1))
    e("s_waitcnt lgkmcnt(0)")
    e(*interleave(ymf(2), [[x] for x in urd(3)], start=0, per=2))
    stamp(a, 10)
    e("v_mov_b32 v7, 336", "v_mul_u32_u24 v5, v7, v1", "v_lshl_add_u32 v5, v2, 4, v5")
    for mu in range(1, 4):
        e(f"s_add_u32 s56, s24, {mu}", "s_and_b32 s56, s56, 3", "s_mul_i32 s56, s56, 3", f"s_add_u32 s56, s56, {mu-1}", f"s_mul_i32 s56, s56, {16*336}",
          f"v_add_u32 v6, s56, v5")
        for nt in range(5): e(f"ds_write_b128 v6, {vr(ACC+(mu*5+nt)*4,4)} offset:{RB+64*nt}")
    e("s_waitcnt lgkmcnt(15)")
    e(*ymf(3))
    e(f"s_mul_i32 s56, s24, {3*16*336}", "v_add_u32 v4, s56, v5")
    e("s_nop 7", "s_nop 1")
    e("s_cmp_eq_u32 s27, 0", "s_cbranch_scc1 K2_direct")
    e(f"s_mul_i32 s56, s24, 7424", f"s_add_u32 s56, s56, {YB}", "v_mov_b32 v7, 464", "v_mul_u32_u24 v5, v7, v1", "v_add_u32 v5, s56, v5",
      "v_lshlrev_b32 v6, 4, v2", "v_sub_u32 v7, v5, v6", "v_add_u32 v7, 52, v7", "v_add_u32 v5, v5, v6")
    for t in range(6):
        for r in (0, 2):
            o0 = (5-t)*16 + 3 - r
            e(f"ds_write2_b32 v7, v{Y+4*t+r}, v{Y+4*t+r+1} offset0:{o0} offset1:{o0-1}")
    e("s_waitcnt lgkmcnt(0)")
    for nt in range(5): e(f"ds_read_b128 {vr(Y+4*nt,4)}, v5 offset:{64+64*nt}")
    e("s_branch K2_ydone")
    a.lab("K2_direct")
    e("s_cmp_eq_u32 s91, 0", "s_cselect_b64 s[58:59], -1, 0", "v_cmp_eq_u32 vcc, 0, v2", "s_and_b64 vcc, vcc, s[58:59]", "s_nop 1", f"v_cndmask_b32_e64 v{Y}, v{Y}, 0, vcc")
    a.lab("K2_ydone")
    e("s_waitcnt lgkmcnt(0)", "s_barrier")
    P = HB
    for i in range(3):
        for nt in range(5): e(f"ds_read_b128 {vr(P+(i*5+nt)*4,4)}, v4 offset:{RB+i*16*336+64*nt}")
    e(q.wait("x"))
    XX = HB + 64
    for nt in range(5):
        xx = XX + nt*4
        e(f"v_lshlrev_b32 v{xx}, 16, v{XR+2*nt}", f"v_and_b32 v{xx+1}, 0xffff0000, v{XR+2*nt}",
          f"v_lshlrev_b32 v{xx+2}, 16, v{XR+2*nt+1}", f"v_and_b32 v{xx+3}, 0xffff0000, v{XR+2*nt+1}")
    if 'dy' in OPT:
        for k in range(20): e(f"v_mov_b32 v{XX+k}, v{Y+k}")
    e(f"v_mov_b32 v6, {fhex(-LN2)}", f"v_mov_b32 v7, {fhex(-LN2)}")
    for nt in range(5):
        for r in (0, 2): e(f"v_pk_mul_f32 {vr(Y+4*nt+r,2)}, {vr(Y+4*nt+r,2)}, v[6:7]")
    e("s_waitcnt lgkmcnt(0)")
    for nt in range(5):
        o = ACC + nt*4
        for r in (0, 2): e(f"v_pk_add_f32 {vr(o+r,2)}, {vr(o+r,2)}, {vr(P+nt*4+r,2)}")
        for r in (0, 2): e(f"v_pk_add_f32 {vr(P+20+nt*4+r,2)}, {vr(P+20+nt*4+r,2)}, {vr(P+40+nt*4+r,2)}")
    for nt in range(5):
        o = ACC + nt*4
        for r in (0, 2): e(f"v_pk_add_f32 {vr(o+r,2)}, {vr(o+r,2)}, {vr(P+20+nt*4+r,2)}")
    EX = ACC + 20; PK = ACC + 40
    if 'do' in OPT:
        for k in range(20): e(f"v_mov_b32 v{XX+k}, v{ACC+k}")
    for nt in range(5):
        o = ACC + nt*4; ex = EX + nt*4
        for r in range(4): e(f"v_exp_f32 v{ex+r}, v{o+r}")
    for nt in range(5):
        o = ACC + nt*4; ex = EX + nt*4
        for r in (0, 2): e(f"v_pk_add_f32 {vr(ex+r,2)}, {vr(ex+r,2)}, 1.0 op_sel_hi:[1,0]")
        for r in (0, 2): e(f"v_pk_mul_f32 {vr(o+r,2)}, {vr(o+r,2)}, {vr(Y+4*nt+r,2)}")
    for nt in range(5):
        ex = EX + nt*4
        for r in range(4): e(f"v_rcp_f32 v{ex+r}, v{ex+r}")
    for nt in range(5):
        o = ACC + nt*4; ex = EX + nt*4; xx = XX + nt*4; pk = PK + nt*2
        if not ('dy' in OPT or 'do' in OPT):
            for r in (0, 2): e(f"v_pk_fma_f32 {vr(xx+r,2)}, {vr(o+r,2)}, {vr(ex+r,2)}, {vr(xx+r,2)}")
        e(f"v_cvt_pk_bf16_f32 v{pk}, v{xx}, v{xx+1}", f"v_cvt_pk_bf16_f32 v{pk+1}, v{xx+2}, v{xx+3}")
        e(f"buffer_store_dwordx2 {vr(pk,2)}, v{XO}, s[20:23], s31 offen offset:{32*nt}")
    e("s_cmp_lg_u32 s92, 0", "s_cbranch_scc1 K2_fin")
    e("s_mov_b32 s62, 0")
    a.lab("K2_ep")
    e("s_waitcnt vmcnt(0)", "s_mov_b64 exec, 0x3f3f3f3f", "s_mov_b32 exec_hi, 0x3f3f3f3f")
    e(f"v_cmp_ne_u32 s[56:57], {NONCE}, v242", f"v_cmp_ne_u32 s[58:59], {NONCE}, v243", f"v_cmp_ne_u32 vcc, {NONCE}, v244", "s_nop 1",
      "s_or_b64 s[56:57], s[56:57], s[58:59]", "s_or_b64 s[56:57], s[56:57], vcc", f"v_cmp_ne_u32 vcc, {NONCE}, v245", "s_nop 1", "s_or_b64 s[56:57], s[56:57], vcc",
      "s_mov_b64 exec, -1", f"v_cmp_ne_u32 vcc, {NONCE}, v246", "s_nop 1", "s_or_b64 s[56:57], s[56:57], vcc",
      "s_cmp_eq_u64 s[56:57], 0", "s_cbranch_scc1 K2_epd", "s_add_u32 s62, s62, 1", f"s_cmp_ge_u32 s62, {SPIN}", "s_cbranch_scc1 K2_epd")
    e(f"s_mov_b32 s56, {FL_H}", "v_lshl_add_u32 v5, v0, 4, s56")
    for n in range(4): e(f"global_load_dword v{242+n}, v5, s[86:87] offset:{1024*n} sc1")
    e(f"global_load_dword v246, v{PU}, s[86:87] sc1", "s_branch K2_ep")
    a.lab("K2_epd")
    e(f"v_mov_b32 v5, {EPO}", f"v_mov_b32 v6, {NONCE}", "s_mov_b64 exec, 1", "global_store_dword v5, v6, s[86:87] sc1")
    a.lab("K2_fin")
    stamp_out(a)
```

```python
import sys
from asmlib import *
import gen
from gen import KN, LOG2E, LN2, H_OFF, H_SZ, U_OFF, U_SZ, X_SZ, W1_SZ, WD_SZ, W2_SZ, SRD3, HEADER, stats_code, lane_masks
W2T_OFF = 0x900000; W2T_SZ = 8*245760
FL = 0xB00000; FL_H = FL; FL_U = FL + 4096; FL_W = FL + 8192; EPO = FL + 16384
SPIN = 200000
STAMP = False
OPT = set()
NONCE = "s65"
def stamp(a, lane, rt=False):
    if STAMP: a.e(f"s_mem{'real' if rt else ''}time s[66:67]", "s_waitcnt lgkmcnt(0)", f"v_writelane_b32 v255, s66, {lane}")
def stamp_out(a):
    if not STAMP: return
    e = a.e
    e("s_waitcnt vmcnt(0)")
    stamp(a, 15); stamp(a, 31, True)
    e("s_lshl_b32 s96, s2, 9", "s_lshl_b32 s97, s24, 7", "s_add_u32 s96, s96, s97", "s_add_u32 s96, s96, 0xF00000")
    e("s_mov_b64 exec, 0xffffffff", "v_lshlrev_b32 v4, 2, v0", "v_add_u32 v4, s96, v4")
    e("global_store_dword v4, v255, s[86:87]", "s_waitcnt vmcnt(0)")

def merge(main, fill, every, start=0):
    out = []; fi = 0; cnt = 0
    for i, m in enumerate(main):
        out.append(m)
        if i >= start:
            cnt += 1
            if cnt >= every and fi < len(fill):
                out += fill[fi]; fi += 1; cnt = 0
    return out, fill[fi:]

class W2L:
    def __init__(s, R): s.n = 0; s.R = R
    def nxt(s):
        n = s.n; s.n += 1
        g = [f"buffer_load_dwordx4 {ar(4*n,4)}, v{s.R}, s[16:19], s94 offen offset:{1024*(n&3)} sc1"]
        if (n & 3) == 3: g.append(f"v_add_u32 v{s.R}, 4096, v{s.R}")
        return g
    def take(s, k): return [s.nxt() for _ in range(min(k, 60 - s.n))]

def k1_half(mf, rd, pre=(), upd=(), groups=(), tail=()):
    n = len(mf); plan = {}
    for i, r in enumerate(rd): plan.setdefault(i, []).append(r)
    for i, p in enumerate(pre): plan.setdefault(i, []).append(p)
    idx = len(rd); ui = 0
    while ui < len(upd):
        j = min(idx, n-1)
        for _ in range(3):
            if ui < len(upd): plan.setdefault(j, []).append(upd[ui]); ui += 1
        idx += 1
    ng = len(groups)
    for gi, g in enumerate(groups):
        j = 1 + (gi * (n-3)) // max(ng, 1)
        plan.setdefault(j, []).extend(g)
    for i, t in enumerate(tail): plan.setdefault(n-2 if i < len(tail)-1 else n-1, []).append(t)
    return slots_merge(mf, plan)

def spin_check(a, name, ld, cmpreg, maskset):
    pass

def k1_main(a, name, slot, mf0, mf1, rd1, rd0, addr_regs, dma_groups, nd, soffw_inc, w2l, WP):
    e = a.e
    e("s_mov_b32 s27, 0", f"s_mov_b32 s64, {slot}")
    e(".p2align 5")
    a.lab(f"{name}_loop")
    pre = ["s_and_b32 s33, s27, 3", f"s_mul_i32 s30, s33, {slot}", "s_cmp_eq_u32 s33, 3", f"s_cselect_b32 s32, {-3*slot}, s64"]
    upd = [f"v_add_u32 v{r}, s32, v{r}" for r in addr_regs]
    e(*k1_half(mf0, rd1, pre=pre, upd=upd))
    e(f"s_waitcnt vmcnt({2*nd}) lgkmcnt(0)")
    e("s_barrier")
    if name == "G1":
        e("s_cmp_eq_u32 s27, s92", "s_cbranch_scc1 G1_sig")
        a.lab("G1_sigd")
    tail = ["s_add_u32 s28, s28, 128"] + ([f"s_add_u32 s29, s29, {soffw_inc}"] if soffw_inc else []) + ["s_add_u32 s27, s27, 1", "s_cmp_lt_u32 s27, 6"]
    e(*k1_half(mf1, rd0, groups=dma_groups, tail=tail))
    e("s_waitcnt lgkmcnt(0)")
    e(f"s_cbranch_scc1 {name}_loop")
    pa, pd = WP
    for s in range(6, 10):
        d = -3*slot if (s & 3) == 3 else slot
        upd = [f"v_add_u32 v{r}, {d}, v{r}" for r in addr_regs] if s < 9 else []
        g0 = w2l.take(5) if s >= 8 else []
        e(*k1_half(mf0, rd1, upd=upd, groups=g0))
        if s == 6: e(f"s_waitcnt vmcnt({2*nd}) lgkmcnt(0)")
        elif s == 7: e("s_waitcnt vmcnt(0) lgkmcnt(0)")
        elif s == 8: e("s_waitcnt lgkmcnt(0)")
        else: e("s_waitcnt lgkmcnt(0)")
        if s < 9 or True: e("s_barrier")
        g1 = []
        if s == 6:
            g1 = [["s_mov_b64 exec, 0x3fffffff", f"global_load_dword v{pd}, v{pa}, s[86:87] sc1", "s_mov_b64 exec, -1"]]
        if s == 7:
            e("s_mov_b64 exec, 0x3fffffff", f"v_cmp_ne_u32 vcc, {NONCE}, v{pd}", "s_mov_b64 exec, -1", "s_nop 2", "s_cbranch_vccnz " + f"{name}_wsp")
            a.lab(f"{name}_wok")
        if s >= 7: g1 = w2l.take(5)
        e(*k1_half(mf1, rd0 if s < 9 else [], groups=g1))
        if s < 9: e("s_waitcnt lgkmcnt(0)")
    def ool(b):
        ee = b.e
        b.lab(f"{name}_wsp")
        ee("s_mov_b32 s62, 0", "s_mov_b64 exec, 0x3fffffff")
        b.lab(f"{name}_wsp1")
        ee(f"global_load_dword v{pd}, v{pa}, s[86:87] sc1", "s_waitcnt vmcnt(0)", f"v_cmp_ne_u32 vcc, {NONCE}, v{pd}", "s_add_u32 s62, s62, 1", "s_nop 1",
           f"s_cbranch_vccz {name}_wsp2", f"s_cmp_lt_u32 s62, {SPIN}", f"s_cbranch_scc1 {name}_wsp1")
        b.lab(f"{name}_wsp2")
        ee("s_mov_b64 exec, -1", f"s_branch {name}_wok")
    return ool

def gen_f(a):
    e = a.e
    ools = []
    e("s_cmp_ge_u32 s2, 256", "s_cbranch_scc1 F_end")
    e("s_load_dwordx16 s[36:51], s[0:1], 0")
    e("s_load_dwordx2 s[86:87], s[0:1], 80")
    e("s_load_dwordx2 s[20:21], s[0:1], 64")
    if STAMP: e("v_mov_b32 v255, 0")
    stamp(a, 30, True); stamp(a, 0)
    e("v_lshrrev_b32 v1, 6, v0", "v_and_b32 v0, 63, v0")
    e("v_readfirstlane_b32 s24, v1")
    e("s_and_b32 s88, s2, 7", "s_lshr_b32 s89, s2, 3", "s_lshr_b32 s56, s88, 1", "s_lshl_b32 s56, s56, 2",
      "s_and_b32 s57, s89, 3", "s_add_u32 s25, s56, s57", "s_lshr_b32 s58, s89, 2", "s_and_b32 s59, s88, 1")
    e("s_lshl_b32 s56, s56, 1", "s_and_b32 s57, s89, 7", "s_add_u32 s90, s56, s57",
      "s_lshl_b32 s56, s59, 2", "s_lshr_b32 s57, s89, 3", "s_add_u32 s91, s56, s57")
    e("v_and_b32 v1, 15, v0", "v_lshrrev_b32 v2, 4, v0", "v_lshrrev_b32 v3, 3, v0", "v_and_b32 v4, 7, v0")
    e(f"s_mov_b32 s6, {X_SZ}", f"s_mov_b32 s7, {SRD3}", f"s_mov_b32 s11, {SRD3}", f"s_mov_b32 s15, {SRD3}", f"s_mov_b32 s19, {SRD3}",
      f"s_mov_b32 s22, {X_SZ}", f"s_mov_b32 s23, {SRD3}")
    e("s_lshl_b32 s60, s25, 2", "s_add_u32 s60, s60, s24", "s_mul_i32 s61, s60, 1280", "s_lshl_b32 s34, s24, 12")
    e("s_mul_i32 s94, s91, 245760", "s_mul_i32 s56, s24, 61440", "s_add_u32 s94, s94, s56")
    e(f"v_mov_b32 v27, {EPO}")
    e("s_cmp_ge_u32 s58, 6", "s_cbranch_scc1 K1_dft")
    XV, WV, WA, XA0, XA1 = 8, 12, 16, 24, 25
    NV, W2R, PA, PD = 26, 28, 29, 30
    ACC, CS, SUM, SQ, ONES = 32, 96, 104, 112, 120
    A0, B0, A1, B1 = 124, 156, 164, 196
    T = 204
    PF, PL, PG, PW, PR = 164, 180, 204+16, 204+17, 204+18
    e("s_mul_i32 s26, s59, 6", "s_add_u32 s26, s26, s58")
    e("v_xor_b32 v5, v4, v2", "v_lshlrev_b32 v5, 4, v5")
    e("v_mov_b32 v7, 81920", "v_mul_u32_u24 v6, v7, v3")
    e("v_add3_u32 v6, v6, v5, s61")
    e(f"v_mov_b32 v{XV}, v6")
    e(f"v_xor_b32 v7, 64, v6")
    e(f"v_add_u32 v{XV+1}, {8*81920-1024}, v7")
    e(f"v_add_u32 v{XV+2}, {16*81920-2048}, v6")
    e(f"v_add_u32 v{XV+3}, {24*81920-3072}, v7")
    e("s_lshl_b32 s62, s24, 4", "v_add_u32 v5, s62, v2", "v_mul_u32_u24 v5, 3072, v5")
    e("v_lshlrev_b32 v6, 1, v2", "v_xor_b32 v6, v6, v1", "v_lshlrev_b32 v6, 4, v6")
    e("s_lshl_b32 s62, s26, 8", "v_add3_u32 v5, v5, v6, s62")
    e(f"v_mov_b32 v{WV}, v5", "v_xor_b32 v6, 128, v5")
    e(f"v_add_u32 v{WV+1}, {8*3072-1024}, v6")
    e(f"v_add_u32 v{WV+2}, {4*3072-2048}, v5")
    e(f"v_add_u32 v{WV+3}, {12*3072-3072}, v6")
    e("s_mul_i32 s56, s2, 2185", "s_lshr_b32 s56, s56, 16")
    e("s_mul_i32 s57, s56, 30", "s_sub_u32 s57, s2, s57")
    e("s_lshl_b32 s93, s56, 9", "s_lshl_b32 s62, s57, 4", "s_add_u32 s93, s93, s62", f"s_add_u32 s93, s93, {FL_W}")
    e("s_lshl_b32 s57, s57, 2", "s_add_u32 s57, s57, s24")
    e("s_mul_i32 s62, s57, 13108", "s_lshr_b32 s62, s62, 16")
    e("s_mul_i32 s63, s62, 5", "s_sub_u32 s63, s57, s63")
    e("s_mul_i32 s95, s62, 81920", "s_mul_i32 s57, s56, 320", "s_add_u32 s95, s95, s57", "s_lshl_b32 s57, s63, 6", "s_add_u32 s95, s95, s57")
    e("s_mul_i32 s56, s56, 491520", "s_mul_i32 s62, s62, 10240", "s_add_u32 s56, s56, s62")
    e("s_lshl_b32 s63, s63, 11")
    e(f"s_add_u32 s57, s63, {245760-5120}", "s_cmp_ge_u32 s63, 5120", "s_cselect_b32 s98, s57, s63", "s_add_u32 s98, s98, s56")
    e("s_add_u32 s63, s63, 1024", f"s_add_u32 s57, s63, {245760-5120}", "s_cmp_ge_u32 s63, 5120", "s_cselect_b32 s99, s57, s63", "s_add_u32 s99, s99, s56")
    e(f"v_lshrrev_b32 v5, 2, v0", "v_and_b32 v6, 3, v0", "v_mul_u32_u24 v7, 1280, v5", f"v_lshl_add_u32 v{PG}, v6, 4, v7")
    e("s_cmp_lt_u32 s2, 120", "s_cselect_b32 s92, 2, 99", "s_cmp_eq_u32 s24, 0", "s_cselect_b32 s92, s92, 99")
    e("s_waitcnt lgkmcnt(0)")
    stamp(a, 1)
    e("global_load_dword v26, v27, s[86:87] sc1")
    e("s_mov_b32 s4, s36", "s_mov_b32 s5, s37", "s_mov_b32 s8, s48", "s_mov_b32 s9, s49", f"s_mov_b32 s10, {W1_SZ}")
    e("s_mov_b32 s16, s50", "s_mov_b32 s17, s51", f"s_mov_b32 s18, {W2_SZ}")
    e("s_cmp_ge_u32 s2, 120", "s_cbranch_scc1 G1_nopre1")
    for n in range(4):
        e(f"buffer_load_dwordx4 {vr(PL+4*n,4)}, v{PG}, s[16:19], s95 offen")
        if n < 3: e("s_add_u32 s95, s95, 20480")
    a.lab("G1_nopre1")
    def g1_dma(m0x, m0w):
        g = []
        g.append([f"s_add_u32 m0, {m0x[0]}, {m0x[1]}", "s_nop 0", f"buffer_load_dwordx4 v{XV}, s[4:7], s28 offen lds"])
        for j in range(1, 4): g.append([f"buffer_load_dwordx4 v{XV+j}, s[4:7], s28 offen offset:{1024*j} lds"])
        g.append([f"s_add_u32 m0, {m0w[0]}, {m0w[1]}", "s_nop 0", f"buffer_load_dwordx4 v{WV}, s[8:11], s29 offen lds"])
        for j in range(1, 4): g.append([f"buffer_load_dwordx4 v{WV+j}, s[8:11], s29 offen offset:{1024*j} lds"])
        return g
    e("s_mov_b32 s28, 0", "s_mov_b32 s29, 0", "s_add_u32 s35, s34, 16384")
    dm = []
    for st in range(4):
        gs = g1_dma(("s34", st*32768), ("s35", st*32768))
        gs[-1] = gs[-1] + ["s_add_u32 s28, s28, 128", "s_add_u32 s29, s29, 196608"]
        dm += gs
    S = A(); se = S.e
    se(f"v_lshrrev_b32 v5, 1, v1", "v_xor_b32 v5, v5, v2", "v_lshlrev_b32 v5, 4, v5")
    se(f"v_lshl_add_u32 v5, v1, 7, v5", f"v_add_u32 v{XA0}, s34, v5", f"v_xor_b32 v{XA1}, 64, v{XA0}")
    se("v_lshrrev_b32 v5, 2, v1", "v_and_b32 v6, 1, v2", "v_lshl_add_u32 v5, v6, 2, v5")
    se("v_lshrrev_b32 v6, 1, v2", "v_lshl_add_u32 v6, v6, 4, v5")
    se("v_lshlrev_b32 v6, 8, v6", "v_and_b32 v7, 3, v1", "v_lshl_add_u32 v6, v7, 3, v6", "v_add_u32 v6, 16384, v6")
    for t in range(8):
        se("s_lshl_b32 s62, s24, 1", f"s_add_u32 s62, s62, {t}", "s_and_b32 s62, s62, 7",
           "v_xor_b32 v7, s62, v5", f"v_lshl_add_u32 v{WA+t}, v7, 5, v6")
    lane_masks(S, T)
    for r in range(ACC, ONES): se(f"v_mov_b32 v{r}, 0")
    for r in range(ONES, ONES+4): se(f"v_mov_b32 v{r}, 0x3f803f80")
    common_setup(S, W2R, PA, PW, PR)
    L = S.L; k = (len(L) + len(dm) - 5) // (len(dm) - 4)
    pos = 0
    for gi, g in enumerate(dm):
        e(*g)
        if gi >= 4:
            e(*L[pos:pos+k]); pos += k
    e(*L[pos:])
    stamp(a, 2)
    e("s_waitcnt vmcnt(32)")
    nonce_calc(a, 26)
    e("s_mov_b32 s16, s86", "s_mov_b32 s17, s87", f"s_add_u32 s16, s16, {W2T_OFF}", "s_addc_u32 s17, s17, 0", f"s_mov_b32 s18, {W2T_SZ}")
    e("s_cmp_ge_u32 s2, 120", "s_cbranch_scc1 G1_nopre2")
    for n in range(4): e(f"ds_write_b128 v{PW}, {vr(PL+4*n,4)} offset:{16*80*n}")
    for k2 in range(2):
        for nt in range(2):
            for hf in range(2):
                e(f"ds_read_b64_tr_b16 {vr(PF+8*k2+4*nt+2*hf,2)}, v{PR} offset:{k2*32*80+hf*16*80+nt*32}")
    e("v_lshlrev_b32 v5, 4, v0", "s_waitcnt lgkmcnt(0)")
    for k2 in range(2):
        for nt in range(2):
            e(f"buffer_store_dwordx4 {vr(PF+8*k2+4*nt,4)}, v5, s[16:19], s{98+nt} offen offset:{0} sc1" if k2 == 0 else
              f"buffer_store_dwordx4 {vr(PF+8*k2+4*nt,4)}, v5, s[16:19], s{98+nt} offen offset:{0} sc1")
        if k2 == 0: e("s_add_u32 s98, s98, 5120", "s_add_u32 s99, s99, 5120")
    e("s_waitcnt vmcnt(28)", "s_branch G1_pre_done")
    a.lab("G1_nopre2")
    e("s_waitcnt vmcnt(24)")
    a.lab("G1_pre_done")
    def g1_mf(Ab, Bb):
        m = []
        for t in range(8):
            for mt in range(2): m.append(mfma(ACC + (t*2+mt)*4, Ab + 4*t, Bb + 4*mt))
            if t < 2: m.append(mfma(CS + 4*t, Ab + 4*t, ONES))
            if t in (2, 3): m.append(mfma(SUM + 4*(t-2), ONES, Bb + 4*(t-2)))
            if t in (4, 5): m.append(mfma(SQ + 4*(t-4), Bb + 4*(t-4), Bb + 4*(t-4)))
        return m
    def g1_rd(Ab, Bb, xa, kk):
        r = []
        for mt in range(2): r.append(f"ds_read_b128 {vr(Bb+4*mt,4)}, v{xa} offset:{2048*mt}")
        for t in range(8):
            for hf in range(2): r.append(f"ds_read_b64_tr_b16 {vr(Ab+4*t+2*hf,2)}, v{WA+t} offset:{kk*8192+hf*2048}")
        return r
    e("s_barrier")
    stamp(a, 3)
    e(*g1_rd(A0, B0, XA0, 0))
    e("s_mov_b32 s28, 512", f"s_mov_b32 s29, {4*196608}")
    e("s_waitcnt lgkmcnt(0)")
    w2l = W2L(W2R)
    ool = k1_main(a, "G1", 32768, g1_mf(A0, B0), g1_mf(A1, B1), g1_rd(A1, B1, XA1, 1), g1_rd(A0, B0, XA0, 0),
            [WA+t for t in range(8)] + [XA0, XA1], g1_dma(("s30", "s34"), ("s30", "s35")), 8, 196608, w2l, (PA, PD))
    ools.append(ool)
    def sig(b):
        b.lab("G1_sig")
        b.e("v_mov_b32 v5, s93", f"v_mov_b32 v6, {NONCE}", "s_mov_b64 exec, 1", "global_store_dword v5, v6, s[86:87] sc1", "s_mov_b64 exec, -1", "s_branch G1_sigd")
    ools.append(sig)
    stamp(a, 4)
    E = A(); ee = E.e
    ee("s_nop 7", "s_nop 7")
    ee("s_lshl_b32 s62, s24, 7", "s_add_u32 s62, s62, 131072")
    ee(f"v_lshl_add_u32 v5, v2, 4, s62")
    ee(f"ds_write_b128 v5, {vr(CS,4)}", f"ds_write_b128 v5, {vr(CS+4,4)} offset:64")
    MB, RS = [T+12, T+13], [T+14, T+15]
    stats_code(E, [SUM, SUM+4], [SQ, SQ+4], T, [(MB[0], RS[0]), (MB[1], RS[1])])
    for mt in range(2): ee(f"v_mul_f32 v{RS[mt]}, {fhex(-LOG2E)}, v{RS[mt]}")
    ee("s_waitcnt lgkmcnt(0)", "s_barrier")
    CSR = A0
    for t in range(8):
        ee("s_lshl_b32 s62, s24, 1", f"s_add_u32 s62, s62, {t}", "s_and_b32 s62, s62, 7", "s_lshl_b32 s62, s62, 6", "s_add_u32 s62, s62, 131072",
           f"v_lshl_add_u32 v5, v2, 4, s62", f"ds_read_b128 {vr(CSR+4*t,4)}, v5")
    ee("s_mov_b32 s12, s86", "s_mov_b32 s13, s87", f"s_mov_b32 s14, {H_SZ}")
    ee("s_and_b32 s62, s60, 31", "s_mul_i32 s62, s62, 48", "s_lshl_b32 s63, s26, 2", "s_add_u32 s62, s62, s63", "s_lshl_b32 s62, s62, 2",
       "s_lshr_b32 s63, s25, 3", "s_lshl_b32 s63, s63, 1", "s_add_u32 s62, s62, s63", "s_lshl_b32 s62, s62, 10")
    ee("v_lshlrev_b32 v6, 4, v0")
    ee("s_waitcnt lgkmcnt(0)")
    TT = A1
    for u in range(4):
        ee(f"s_add_u32 s63, s24, {u}", "s_and_b32 s63, s63, 3", "s_lshl_b32 s63, s63, 12", "s_add_u32 s63, s63, s62")
        for mt in range(2):
            tb = TT + ((u*2+mt) & 1) * 20
            z = tb; ex = tb + 8; pk = tb + 16
            vals = [(ACC + ((2*u+h)*2+mt)*4 + r, CSR + (2*u+h)*4 + r) for h in range(2) for r in range(4)]
            for k, (ac, cs) in enumerate(vals): ee(f"v_fma_f32 v{z+k}, -v{MB[mt]}, v{cs}, v{ac}")
            for k in range(0, 8, 2): ee(f"v_pk_mul_f32 {vr(z+k,2)}, {vr(z+k,2)}, {vr(RS[mt]&~1,2)} op_sel:[0,{RS[mt]&1}] op_sel_hi:[1,{RS[mt]&1}]")
            for k in range(8): ee(f"v_exp_f32 v{ex+k}, v{z+k}")
            for k in range(0, 8, 2): ee(f"v_pk_add_f32 {vr(ex+k,2)}, {vr(ex+k,2)}, 1.0 op_sel_hi:[1,0]")
            for k in range(8): ee(f"v_rcp_f32 v{ex+k}, v{ex+k}")
            for k in range(0, 8, 2): ee(f"v_pk_mul_f32 {vr(z+k,2)}, {vr(z+k,2)}, {vr(ex+k,2)}")
            for k in range(4): ee(f"v_cvt_pk_bf16_f32 v{pk+k}, v{z+2*k}, v{z+2*k+1}")
            ee(f"buffer_store_dwordx4 {vr(pk,4)}, v6, s[12:15], s63 offen offset:{1024*mt} sc1")
    NDEF = 8
    out, left = merge_safe(E.L, w2l.take(60 - w2l.n - NDEF), 11, start=4)
    e(*out)
    for g in left: e(*g)
    stamp(a, 5)
    rest = w2l.take(60)
    e("s_mul_i32 s56, s26, 22", "s_lshr_b32 s56, s56, 6", "s_mul_i32 s57, s56, 3", "s_sub_u32 s57, s26, s57", "s_lshl_b32 s57, s57, 1",
      "s_lshr_b32 s62, s25, 3", "s_add_u32 s57, s57, s62", "s_lshl_b32 s57, s57, 4", "s_lshl_b32 s56, s56, 7", "s_add_u32 s57, s57, s56",
      "s_and_b32 s56, s25, 7", "s_lshl_b32 s56, s56, 9", "s_add_u32 s57, s57, s56", f"s_add_u32 s93, s57, {FL_H}")
    for g in rest: e(*g)
    publish(a, "G1", len(rest))
    e("s_branch K2_start")
    a.lab("K1_dft")
    XV, DV, XA0, XA1, BA0, BA1 = 8, 12, 17, 18, 19, 20
    NV, W2R, PA, PD = 26, 28, 29, 30
    ACC, SUM, SQ, ONES = 32-8, 104, 112, 120
    ACC = 24
    W2R, PA, PD = 252, 253, 254
    A0, B0, A1, B1 = 124, 132, 172, 180
    WC = 220
    e("s_lshl_b32 s26, s59, 1", "s_add_u32 s26, s26, s58", "s_sub_u32 s26, s26, 6")
    e("v_xor_b32 v5, v4, v2", "v_lshlrev_b32 v5, 4, v5")
    e("v_lshrrev_b32 v6, 2, v3", "v_and_b32 v7, 3, v3", "v_lshl_add_u32 v6, v6, 3, v7")
    e("v_mov_b32 v7, 81920", "v_mul_u32_u24 v6, v7, v6")
    e("v_add3_u32 v6, v6, v5, s61")
    e(f"v_mov_b32 v{XV}, v6", "v_xor_b32 v7, 64, v6")
    e(f"v_add_u32 v{XV+1}, {16*81920-1024}, v7")
    e(f"v_add_u32 v{XV+2}, {4*81920-2048}, v6")
    e(f"v_add_u32 v{XV+3}, {20*81920-3072}, v7")
    e("s_and_b32 s62, s24, 1", "s_lshl_b32 s63, s62, 2", "v_add_u32 v5, s63, v2", "v_xor_b32 v5, v5, v4", "v_lshlrev_b32 v5, 4, v5")
    e("s_mul_i32 s63, s26, 80", "s_lshl_b32 s62, s62, 3", "s_add_u32 s63, s63, s62", "v_add_u32 v6, s63, v3")
    e("v_mov_b32 v7, 1280", "v_mad_u32_u24 v21, v6, v7, v5")
    for j in range(1, 5): e(f"v_add_u32 v{DV+j}, {16*1280*j - (1024*j if j < 4 else 0)}, v21")
    e("v_cmp_eq_u32 vcc, 0, v6", f"v_add_u32 v22, {320*1280}, v21", "s_nop 0", f"v_cndmask_b32 v{DV}, v21, v22, vcc")
    e("v_lshlrev_b32 v5, 18, v1", "v_lshl_add_u32 v5, v2, 4, v5", f"v_add_u32 v6, {16*262144}, v5")
    e("s_mov_b32 s28, 0", "s_mul_i32 s35, s24, 5120", "s_add_u32 s35, s35, 16384")
    e("s_waitcnt lgkmcnt(0)")
    stamp(a, 1)
    e("global_load_dword v23, v27, s[86:87] sc1")
    e("s_mov_b32 s4, s36", "s_mov_b32 s5, s37")
    e("s_cmp_ge_u32 s24, 2", "s_cselect_b32 s8, s44, s42", "s_cselect_b32 s9, s45, s43", f"s_mov_b32 s10, {WD_SZ}")
    def dft_dma(base0, base1):
        g = []
        g.append([f"s_add_u32 m0, {base0[0]}, {base0[1]}", "s_nop 0", f"buffer_load_dwordx4 v{XV}, s[4:7], s28 offen lds"])
        for j in range(1, 4): g.append([f"buffer_load_dwordx4 v{XV+j}, s[4:7], s28 offen offset:{1024*j} lds"])
        g.append([f"s_add_u32 m0, {base1[0]}, {base1[1]}", "s_nop 0", f"buffer_load_dwordx4 v{DV}, s[8:11], s28 offen lds"])
        for j in range(1, 4): g.append([f"buffer_load_dwordx4 v{DV+j}, s[8:11], s28 offen offset:{1024*j} lds"])
        g.append(["s_add_u32 m0, m0, 4096", "s_nop 0", f"buffer_load_dwordx4 v{DV+4}, s[8:11], s28 offen lds"])
        return g
    dm = []
    for st in range(4):
        gs = dft_dma(("s34", st*36864), ("s35", st*36864))
        gs[-1] = gs[-1] + ["s_add_u32 s28, s28, 128"]
        dm += gs
        if st == 0:
            dm.append([f"global_load_dwordx4 {vr(WC,4)}, v5, s[38:39]", f"global_load_dwordx4 {vr(WC+4,4)}, v6, s[38:39]",
                       f"global_load_dwordx4 {vr(WC+8,4)}, v5, s[40:41]", f"global_load_dwordx4 {vr(WC+12,4)}, v6, s[40:41]"])
    T = 236
    S = A(); se = S.e
    se(f"v_lshrrev_b32 v7, 1, v1", "v_xor_b32 v7, v7, v2", "v_lshlrev_b32 v7, 4, v7")
    se(f"v_lshl_add_u32 v21, v1, 7, v7", f"v_add_u32 v{XA0}, s34, v21", f"v_xor_b32 v{XA1}, 64, v{XA0}")
    se("v_lshrrev_b32 v21, 3, v1", "v_mul_u32_u24 v21, 5120, v21", "v_and_b32 v22, 7, v1", "v_lshl_add_u32 v21, v22, 7, v21")
    se(f"v_add_u32 v21, v21, v7", f"v_add_u32 v{BA0}, 16384, v21", f"v_xor_b32 v{BA1}, 64, v{BA0}")
    for r in range(ACC, ONES): se(f"v_mov_b32 v{r}, 0")
    for r in range(ONES, ONES+4): se(f"v_mov_b32 v{r}, 0x3f803f80")
    lane_masks(S, T)
    common_setup(S, W2R, PA, None, None)
    L = S.L; k = (len(L) + len(dm) - 11) // (len(dm) - 10)
    pos = 0
    for gi, g in enumerate(dm):
        e(*g)
        if gi >= 10:
            e(*L[pos:pos+k]); pos += k
    e(*L[pos:])
    stamp(a, 2)
    e("s_waitcnt vmcnt(31)")
    nonce_calc(a, 23)
    e("s_mov_b32 s16, s86", "s_mov_b32 s17, s87", f"s_add_u32 s16, s16, {W2T_OFF}", "s_addc_u32 s17, s17, 0", f"s_mov_b32 s18, {W2T_SZ}")
    def dacc(p, part, mt): return ACC + ((p*2+part)*2+mt)*4
    def dft_mf(Ab, Bb):
        m = []
        for p in range(5):
            for part in range(2):
                for mt in range(2): m.append(mfma(dacc(p, part, mt), Ab + 4*mt, Bb + (part*5+p)*4))
            if p < 2: m.append(mfma(SUM + 4*p, ONES, Ab + 4*p))
            if p in (2, 3): m.append(mfma(SQ + 4*(p-2), Ab + 4*(p-2), Ab + 4*(p-2)))
        return m
    def dft_rd(Ab, Bb, xa, ba):
        r = []
        for mt in range(2): r.append(f"ds_read_b128 {vr(Ab+4*mt,4)}, v{xa} offset:{2048*mt}")
        for p in range(5):
            for part in range(2): r.append(f"ds_read_b128 {vr(Bb+(part*5+p)*4,4)}, v{ba} offset:{part*10240+p*1024}")
        return r
    e("s_barrier")
    stamp(a, 3)
    e(*dft_rd(A0, B0, XA0, BA0))
    e("s_mov_b32 s28, 512")
    e("s_waitcnt lgkmcnt(0)")
    w2l = W2L(W2R)
    ool = k1_main(a, "DF", 36864, dft_mf(A0, B0), dft_mf(A1, B1), dft_rd(A1, B1, XA1, BA1), dft_rd(A0, B0, XA0, BA0),
            [XA0, XA1, BA0, BA1], dft_dma(("s30", "s34"), ("s30", "s35")), 9, 0, w2l, (PA, PD))
    ools.append(ool)
    stamp(a, 4)
    E = A(); ee = E.e
    ee("s_nop 7", "s_nop 7")
    MB, RS = [T+12, T+13], [T+14, T+15]
    stats_code(E, [SUM, SUM+4], [SQ, SQ+4], T, [(MB[0], RS[0]), (MB[1], RS[1])])
    RR = A0
    ee("v_lshlrev_b32 v5, 4, v2")
    for mt in range(2):
        for r in range(4): ee(f"v_add_u32 v6, {4*r}, v5", f"ds_bpermute_b32 v{RR+mt*4+r}, v6, v{RS[mt]}")
    for k in range(8): ee(f"v_xor_b32 v{WC+16+k}, 0x80008000, v{WC+8+k}")
    ee("s_waitcnt lgkmcnt(0)")
    PK = B0
    for p in range(5):
        for part in range(2):
            for mt in range(2):
                ac = dacc(p, part, mt)
                for r in range(0, 4, 2): ee(f"v_pk_mul_f32 {vr(ac+r,2)}, {vr(ac+r,2)}, {vr(RR+mt*4+r,2)}")
            for mt in range(2):
                ac = dacc(p, part, mt)
                for h in range(2): ee(f"v_cvt_pk_bf16_f32 v{PK+8*p+4*part+2*mt+h}, v{ac+2*h}, v{ac+2*h+1}")
    ee("s_nop 1")
    def ud(p, nt, c): return ACC + p*16 + nt*8 + 4*c
    for p in range(5):
        aa, bb = PK+8*p, PK+8*p+4
        for nt in range(2):
            ee(mfma0(ud(p, nt, 0), aa, WC + 4*nt)); ee(mfma0(ud(p, nt, 1), aa, WC + 8 + 4*nt))
        for nt in range(2):
            ee(mfma(ud(p, nt, 0), bb, WC + 16 + 4*nt)); ee(mfma(ud(p, nt, 1), bb, WC + 4*nt))
    ee(f"s_mov_b32 s14, {U_SZ}", "s_mov_b32 s12, s86", "s_mov_b32 s13, s87")
    ee(f"s_add_u32 s12, s12, {U_OFF}", "s_addc_u32 s13, s13, 0")
    ee("s_mul_i32 s62, s60, 80", "s_mul_i32 s63, s26, 20", "s_add_u32 s62, s62, s63", "s_lshl_b32 s62, s62, 4")
    ee("v_mov_b32 v7, 81920", "v_mul_u32_u24 v5, v7, v1", "v_lshl_add_u32 v5, v2, 4, v5", f"v_add_u32 v6, {16*81920}, v5")
    ee("s_nop 7")
    k = 0
    for p in range(5):
        for nt in range(2):
            tb = A1 + (k % 4) * 4; k += 1
            re, im = ud(p, nt, 0), ud(p, nt, 1)
            ee(f"v_cvt_pk_bf16_f32 v{tb}, v{re}, v{re+1}", f"v_cvt_pk_bf16_f32 v{tb+1}, v{re+2}, v{re+3}",
               f"v_cvt_pk_bf16_f32 v{tb+2}, v{im}, v{im+1}", f"v_cvt_pk_bf16_f32 v{tb+3}, v{im+2}, v{im+3}")
            ee(f"buffer_store_dwordx4 {vr(tb,4)}, v{5+nt}, s[12:15], s62 offen offset:{64*p} sc1")
    out, left = merge_safe(E.L, w2l.take(60 - w2l.n - NDEF), 7, start=4)
    e(*out)
    for g in left: e(*g)
    stamp(a, 5)
    rest = w2l.take(60)
    e("s_lshl_b32 s57, s26, 4", "s_add_u32 s57, s57, s25", "s_lshl_b32 s57, s57, 4", f"s_add_u32 s93, s57, {FL_U}")
    for g in rest: e(*g)
    publish(a, "DF", len(rest))
    a.lab("K2_start")
    from gen2k2 import gen_k2f
    gen_k2f(a, ools, stamp, stamp_out)
    a.lab("F_end")
    e("s_endpgm")
    for o in ools: o(a)

def merge_safe(main, fill, every, start=0):
    out = []; fi = 0; cnt = 0
    for i, m in enumerate(main):
        out.append(m)
        if i >= start:
            cnt += 1
            nxt = main[i+1] if i+1 < len(main) else ""
            if cnt >= every and fi < len(fill) and not nxt.startswith(("s_addc", "s_cselect", "s_cbranch", "v_cndmask")):
                out += fill[fi]; fi += 1; cnt = 0
    return out, fill[fi:]

def nonce_calc(a, v):
    a.e("s_nop 0", f"v_readfirstlane_b32 {NONCE}, v{v}", "s_nop 3", f"s_mul_i32 {NONCE}, {NONCE}, 0x9E3779B1", f"s_add_u32 {NONCE}, {NONCE}, 0x7F4A7C15")

def common_setup(S, W2R, PA, PW, PR):
    se = S.e
    se(f"v_lshlrev_b32 v{W2R}, 4, v0")
    se("s_lshr_b32 s62, s91, 1", "s_lshl_b32 s62, s62, 9", f"s_add_u32 s62, s62, {FL_W}", f"v_lshl_add_u32 v{PA}, v0, 4, s62")
    if PW is not None:
        se("s_mul_i32 s62, s24, 5120", "s_add_u32 s62, s62, 131072")
        se("v_lshrrev_b32 v7, 2, v0", "v_mul_u32_u24 v7, 80, v7", "v_and_b32 v6, 3, v0", "v_lshl_add_u32 v7, v6, 4, v7", f"v_add_u32 v{PW}, s62, v7")
        se("v_lshrrev_b32 v7, 2, v1", "v_lshl_add_u32 v7, v2, 2, v7", "v_mul_u32_u24 v7, 80, v7", "v_lshl_add_u32 v7, v6, 3, v7", f"v_add_u32 v{PR}, s62, v7")

def publish(a, name, nrest):
    e = a.e
    from gen2k2 import k2_setup
    k2_setup(a)
    import gen2k2
    e(f"s_waitcnt vmcnt({nrest + gen2k2.K2_SETUP_VM})")
    e("s_barrier")
    stamp(a, 6)
    e("s_cmp_lg_u32 s24, 0", f"s_cbranch_scc1 {name}_pubd")
    e("v_mov_b32 v5, s93", f"v_mov_b32 v6, {NONCE}", "s_mov_b64 exec, 1", "global_store_dword v5, v6, s[86:87] sc1", "s_mov_b64 exec, -1")
    a.lab(f"{name}_pubd")

def build():
    lab = "f_kernel" if 'list' in OPT else KN + "_kernel"
    out = HEADER
    if 'list' in OPT: out += f"; @launch kernel={lab} grid=(256,1,1) block=(256,1,1) lds=160768\n"
    else: out += f"; @launch grid=(256,1,1) block=(256,1,1) lds=160768\n"
    out += '.amdgcn_target "amdgcn-amd-amdhsa--gfx950"\n.text\n'
    a = A(); gen_f(a)
    out += f".globl {lab}\n.p2align 8\n.type {lab},@function\n{lab}:\n" + a.text()
    out += '.section .rodata,"a"\n.p2align 6\n' + gen.kernel_desc(lab, 256, 256, 512)
    return out

if __name__ == "__main__":
    out = sys.argv[1]
    if len(sys.argv) > 2:
        for o in sys.argv[2].split(','):
            if o == 'st': STAMP = True
            else: OPT.add(o)
    import gen2k2
    gen2k2.OPT = OPT; gen2k2.STAMP = STAMP
    open(out, "w").write(build())
```

```python
from asmlib import *
from gen import LN2, H_SZ, U_OFF, U_SZ, SRD3
STAMP = False
OPT = set()
FL = 0xB00000; FL_H = FL; FL_U = FL + 4096; EPO = FL + 16384
SPIN = 200000
NONCE = "s65"
K2_SETUP_VM = 8
USTEP = 4
HV, UA, XO, PH, PU = 8, 12, 13, 14, 15
Y, ACC, HB, US6 = 16, 40, 120, 248
PDH, PDU = 252, 253
UB, YB, RB = 102400, 131072, 0
def ust(n): return Y + 4*n if n < 6 else US6

def k2_setup(a):
    e = a.e
    e("s_sub_u32 s56, 32, s90", "s_and_b32 s56, s56, 31", "s_mul_i32 s57, s91, 20", "s_sub_u32 s58, 140, s57",
      "s_cmp_ge_u32 s91, 4", "s_cselect_b32 s27, 1, 0", "s_cselect_b32 s28, s56, s90", "s_cselect_b32 s29, s58, s57")
    e("s_and_b32 s56, s24, 1", "s_lshl_b32 s56, s56, 10", "s_lshr_b32 s57, s24, 1", "s_lshl_b32 s57, s57, 5", "s_add_u32 s30, s56, s57", "s_add_u32 s30, s30, s90")
    e("v_lshlrev_b32 v5, 6, v1", "v_add_u32 v5, s30, v5", "v_lshlrev_b32 v5, 12, v5",
      "v_lshrrev_b32 v6, 1, v2", "v_lshl_add_u32 v5, v6, 4, v5")
    e("v_and_b32 v6, 1, v2", "v_cmp_eq_u32 vcc, 0, v6", "s_nop 1", "s_mov_b64 exec, vcc")
    for k in range(4): e(f"global_load_dwordx4 {ar(240+4*k,4)}, v5, s[38:39] offset:{32*k}")
    e("s_not_b64 exec, exec")
    for k in range(4): e(f"global_load_dwordx4 {ar(240+4*k,4)}, v5, s[40:41] offset:{32*k}")
    e("s_mov_b64 exec, -1")
    e("s_mov_b32 s4, s86", "s_mov_b32 s5, s87", f"s_mov_b32 s6, {H_SZ}")
    e("s_mov_b32 s8, s86", "s_mov_b32 s9, s87", f"s_add_u32 s8, s8, {U_OFF}", "s_addc_u32 s9, s9, 0", f"s_mov_b32 s10, {U_SZ}")
    e("v_mov_b32 v7, 81920", f"v_mul_u32_u24 v{XO}, v7, v1", f"v_lshl_add_u32 v{XO}, v2, 3, v{XO}")
    e("s_mul_i32 s31, s30, 1280", "s_mul_i32 s56, s91, 160", "s_add_u32 s31, s31, s56")
    e("s_mul_i32 s32, s28, 81920")
    e("s_mul_i32 s56, s24, 448", "v_add_u32 v5, s56, v0")
    for n in range(7):
        e(f"v_add_u32 v6, {64*n}, v5", "v_mul_u32_u24 v7, 2341, v6", "v_lshrrev_b32 v7, 16, v7",
          "v_mul_u32_u24 v3, 28, v7", "v_sub_u32 v6, v6, v3", "v_add_u32 v6, s29, v6",
          "v_subrev_u32 v3, 80, v6", "v_cmp_le_u32 vcc, 80, v6", "v_lshlrev_b32 v4, 8, v7", "v_cndmask_b32 v6, v6, v3, vcc",
          "v_lshl_add_u32 v4, v7, 10, v4", f"v_lshl_add_u32 v{ust(n)}, v6, 4, v4")
    for mu in range(4):
        e(f"s_add_u32 s56, s24, {mu}", "s_and_b32 s56, s56, 3", "s_lshl_b32 s56, s56, 10", f"v_lshl_add_u32 v{HV+mu}, v0, 4, s56")
    e("s_mul_i32 s34, s90, 48", "s_mul_i32 s56, s24, 12", "s_add_u32 s34, s34, s56", "s_lshl_b32 s34, s34, 12")
    e("v_lshrrev_b32 v5, 2, v1", "v_lshrrev_b32 v6, 1, v2", "v_lshl_add_u32 v5, v6, 3, v5", "v_mul_u32_u24 v5, 448, v5",
      "v_and_b32 v6, 3, v1", "v_lshl_add_u32 v5, v6, 4, v5", "v_and_b32 v6, 1, v2", "v_lshl_add_u32 v5, v6, 3, v5", f"v_add_u32 v{UA}, {UB}, v5")
    e("s_lshr_b32 s56, s90, 2", "s_lshl_b32 s56, s56, 9", "s_lshl_b32 s57, s24, 7", "s_add_u32 s56, s56, s57", f"s_add_u32 s56, s56, {FL_H}",
      f"v_lshl_add_u32 v{PH}, v0, 4, s56", f"s_mov_b32 s56, {FL_U}", f"v_lshl_add_u32 v{PU}, v0, 4, s56")
    e("s_cmp_eq_u32 s27, 0", "s_cselect_b32 s33, 0x80008000, 0")
    e("s_or_b32 s92, s2, s24")

class VQ:
    def __init__(s): s.q = []
    def add(s, tag): s.q.append(tag)
    def wait(s, tag):
        idx = max(i for i, t in enumerate(s.q) if t == tag)
        return f"s_waitcnt vmcnt({len(s.q) - 1 - idx})"

def gen_k2f(a, ools, stamp, stamp_out):
    e = a.e
    e("s_mov_b32 s62, 0", "s_mov_b64 exec, 0x3f")
    a.lab("K2_hp")
    e(f"global_load_dword v{PDH}, v{PH}, s[86:87] sc1", "s_waitcnt vmcnt(0)", f"v_cmp_ne_u32 vcc, {NONCE}, v{PDH}", "s_add_u32 s62, s62, 1", "s_nop 1",
      "s_cbranch_vccz K2_hpd", f"s_cmp_lt_u32 s62, {SPIN}", "s_cbranch_scc1 K2_hp")
    a.lab("K2_hpd")
    e("s_mov_b64 exec, -1")
    stamp(a, 7)
    q = VQ()
    def hload(k):
        g = []
        hb = HB + (k % 8)*16
        for mu in range(4):
            g.append([f"buffer_load_dwordx4 {vr(hb+4*mu,4)}, v{HV+mu}, s[4:7], s34 offen sc1"]); q.add(f"h{k}")
        g[-1].append("s_add_u32 s34, s34, 4096")
        return g
    NPRE = 3
    for k in range(NPRE):
        for g in hload(k): e(*g)
    stamp(a, 8)
    def smf(kk):
        hb = HB + (kk % 8)*16; m = []
        for nt in range(5):
            for mu in range(4):
                d = ACC + (mu*5+nt)*4
                m.append((mfma0 if kk == 0 else mfma)(d, 20*kk+4*nt, hb+4*mu, aa=True))
        return m
    UAb = HB + 64
    def urd(k):
        r = []
        for t in range(6):
            for hf in range(2):
                r.append(f"ds_read_b64_tr_b16 {vr(UAb+(k&1)*24+4*t+2*hf,2)}, v{UA} offset:{k*7168+hf*1792+t*64}")
        return r
    def ymf(k):
        m = []
        for t in range(6):
            c = "0" if k == 0 else vr(Y+4*t, 4)
            m.append(f"v_mfma_f32_16x16x32_bf16 {vr(Y+4*t,4)}, {vr(UAb+(k&1)*24+4*t,4)}, {ar(240+4*k,4)}, {c}")
        return m
    XR = HB + 7*16
    for kk in range(9):
        e(q.wait(f"h{kk}"))
        fill = []
        sched = {0: [3, 4], 1: [5, 6], 2: [7, 8], 3: [9, 10], 4: [11]}
        if kk == USTEP - 2:
            fill.append([f"global_load_dword v{PDU}, v{PU}, s[86:87] sc1"]); q.add("uf")
        for hk in sched.get(kk, []): fill += hload(hk)
        if kk == USTEP:
            e(q.wait("uf"))
            e(f"v_cmp_ne_u32 vcc, {NONCE}, v{PDU}", "s_nop 2", "s_cbranch_vccnz K2_usp")
            a.lab("K2_uok")
            for n in range(7):
                fill.append([f"buffer_load_dwordx4 {vr(ust(n),4)}, v{ust(n)}, s[8:11], s32 offen sc1"]); q.add("u")
        if kk == 8:
            for nt in range(5):
                fill.append([f"buffer_load_dwordx2 {vr(XR+2*nt,2)}, v{XO}, s[12:15], s31 offen offset:{32*nt}"]); q.add("x")
        e(*interleave(smf(kk), fill, start=1, per=1))
        if kk == 7:
            e("s_mov_b32 s12, s36", "s_mov_b32 s13, s37", f"s_mov_b32 s14, {2048*1280}")
    def usp(b):
        b.lab("K2_usp")
        b.e("s_mov_b32 s62, 0")
        b.lab("K2_usp1")
        b.e(f"global_load_dword v{PDU}, v{PU}, s[86:87] sc1", "s_waitcnt vmcnt(0)", f"v_cmp_ne_u32 vcc, {NONCE}, v{PDU}", "s_add_u32 s62, s62, 1", "s_nop 1",
            "s_cbranch_vccz K2_uok", f"s_cmp_lt_u32 s62, {SPIN}", "s_cbranch_scc1 K2_usp1", "s_branch K2_uok")
    ools.append(usp)
    stamp(a, 9)
    e("s_cmp_lg_u32 s92, 0", "s_cbranch_scc1 K2_noep")
    e(f"s_mov_b32 s56, {FL_H}", "v_lshl_add_u32 v5, v0, 4, s56")
    for n in range(4): e(f"global_load_dword v{242+n}, v5, s[86:87] offset:{1024*n} sc1")
    e(f"global_load_dword v246, v{PU}, s[86:87] sc1")
    a.lab("K2_noep")
    e("s_mul_i32 s57, s24, 7168", f"s_add_u32 s57, s57, {UB}", "v_lshl_add_u32 v3, v0, 4, s57")
    e(q.wait("u"))
    for n in range(7):
        e(f"v_xor_b32 v{ust(n)+2}, s33, v{ust(n)+2}", f"v_xor_b32 v{ust(n)+3}, s33, v{ust(n)+3}", f"ds_write_b128 v3, {vr(ust(n),4)} offset:{1024*n}")
    e("s_waitcnt lgkmcnt(0)", "s_barrier")
    e(q.wait("h9"))
    e(*interleave(smf(9), [[x] for x in urd(0)], start=0, per=1))
    e("s_waitcnt lgkmcnt(0)", q.wait("h10"))
    e(*interleave(ymf(0) + smf(10), [[x] for x in urd(1)], start=6, per=1))
    e("s_waitcnt lgkmcnt(0)", q.wait("h11"))
    e(*interleave(ymf(1) + smf(11), [[x] for x in urd(2)], start=6, per=1))
    e("s_waitcnt lgkmcnt(0)")
    e(*interleave(ymf(2), [[x] for x in urd(3)], start=0, per=2))
    stamp(a, 10)
    e("v_mov_b32 v7, 336", "v_mul_u32_u24 v5, v7, v1", "v_lshl_add_u32 v5, v2, 4, v5")
    for mu in range(1, 4):
        e(f"s_add_u32 s56, s24, {mu}", "s_and_b32 s56, s56, 3", "s_mul_i32 s56, s56, 3", f"s_add_u32 s56, s56, {mu-1}", f"s_mul_i32 s56, s56, {16*336}",
          f"v_add_u32 v6, s56, v5")
        for nt in range(5): e(f"ds_write_b128 v6, {vr(ACC+(mu*5+nt)*4,4)} offset:{RB+64*nt}")
    e("s_waitcnt lgkmcnt(15)")
    e(*ymf(3))
    e(f"s_mul_i32 s56, s24, {3*16*336}", "v_add_u32 v4, s56, v5")
    e("s_nop 7", "s_nop 1")
    e("s_cmp_eq_u32 s27, 0", "s_cbranch_scc1 K2_direct")
    e(f"s_mul_i32 s56, s24, 7424", f"s_add_u32 s56, s56, {YB}", "v_mov_b32 v7, 464", "v_mul_u32_u24 v5, v7, v1", "v_add_u32 v5, s56, v5",
      "v_lshlrev_b32 v6, 4, v2", "v_sub_u32 v7, v5, v6", "v_add_u32 v7, 52, v7", "v_add_u32 v5, v5, v6")
    for t in range(6):
        for r in (0, 2):
            o0 = (5-t)*16 + 3 - r
            e(f"ds_write2_b32 v7, v{Y+4*t+r}, v{Y+4*t+r+1} offset0:{o0} offset1:{o0-1}")
    e("s_waitcnt lgkmcnt(0)")
    for nt in range(5): e(f"ds_read_b128 {vr(Y+4*nt,4)}, v5 offset:{64+64*nt}")
    e("s_branch K2_ydone")
    a.lab("K2_direct")
    e("s_cmp_eq_u32 s91, 0", "s_cselect_b64 s[58:59], -1, 0", "v_cmp_eq_u32 vcc, 0, v2", "s_and_b64 vcc, vcc, s[58:59]", "s_nop 1", f"v_cndmask_b32_e64 v{Y}, v{Y}, 0, vcc")
    a.lab("K2_ydone")
    e("s_waitcnt lgkmcnt(0)", "s_barrier")
    P = HB
    for i in range(3):
        for nt in range(5): e(f"ds_read_b128 {vr(P+(i*5+nt)*4,4)}, v4 offset:{RB+i*16*336+64*nt}")
    e(q.wait("x"))
    XX = HB + 64
    for nt in range(5):
        xx = XX + nt*4
        e(f"v_lshlrev_b32 v{xx}, 16, v{XR+2*nt}", f"v_and_b32 v{xx+1}, 0xffff0000, v{XR+2*nt}",
          f"v_lshlrev_b32 v{xx+2}, 16, v{XR+2*nt+1}", f"v_and_b32 v{xx+3}, 0xffff0000, v{XR+2*nt+1}")
    if 'dy' in OPT:
        for k in range(20): e(f"v_mov_b32 v{XX+k}, v{Y+k}")
    e(f"v_mov_b32 v6, {fhex(-LN2)}", f"v_mov_b32 v7, {fhex(-LN2)}")
    for nt in range(5):
        for r in (0, 2): e(f"v_pk_mul_f32 {vr(Y+4*nt+r,2)}, {vr(Y+4*nt+r,2)}, v[6:7]")
    e("s_waitcnt lgkmcnt(0)")
    for nt in range(5):
        o = ACC + nt*4
        for r in (0, 2): e(f"v_pk_add_f32 {vr(o+r,2)}, {vr(o+r,2)}, {vr(P+nt*4+r,2)}")
        for r in (0, 2): e(f"v_pk_add_f32 {vr(P+20+nt*4+r,2)}, {vr(P+20+nt*4+r,2)}, {vr(P+40+nt*4+r,2)}")
    for nt in range(5):
        o = ACC + nt*4
        for r in (0, 2): e(f"v_pk_add_f32 {vr(o+r,2)}, {vr(o+r,2)}, {vr(P+20+nt*4+r,2)}")
    EX = ACC + 20; PK = ACC + 40
    if 'do' in OPT:
        for k in range(20): e(f"v_mov_b32 v{XX+k}, v{ACC+k}")
    for nt in range(5):
        o = ACC + nt*4; ex = EX + nt*4
        for r in range(4): e(f"v_exp_f32 v{ex+r}, v{o+r}")
    for nt in range(5):
        o = ACC + nt*4; ex = EX + nt*4
        for r in (0, 2): e(f"v_pk_add_f32 {vr(ex+r,2)}, {vr(ex+r,2)}, 1.0 op_sel_hi:[1,0]")
        for r in (0, 2): e(f"v_pk_mul_f32 {vr(o+r,2)}, {vr(o+r,2)}, {vr(Y+4*nt+r,2)}")
    for nt in range(5):
        ex = EX + nt*4
        for r in range(4): e(f"v_rcp_f32 v{ex+r}, v{ex+r}")
    for nt in range(5):
        o = ACC + nt*4; ex = EX + nt*4; xx = XX + nt*4; pk = PK + nt*2
        if not ('dy' in OPT or 'do' in OPT):
            for r in (0, 2): e(f"v_pk_fma_f32 {vr(xx+r,2)}, {vr(o+r,2)}, {vr(ex+r,2)}, {vr(xx+r,2)}")
        e(f"v_cvt_pk_bf16_f32 v{pk}, v{xx}, v{xx+1}", f"v_cvt_pk_bf16_f32 v{pk+1}, v{xx+2}, v{xx+3}")
        e(f"buffer_store_dwordx2 {vr(pk,2)}, v{XO}, s[20:23], s31 offen offset:{32*nt}")
    e("s_cmp_lg_u32 s92, 0", "s_cbranch_scc1 K2_fin")
    e("s_mov_b32 s62, 0")
    a.lab("K2_ep")
    e("s_waitcnt vmcnt(0)", "s_mov_b64 exec, 0x3f3f3f3f", "s_mov_b32 exec_hi, 0x3f3f3f3f")
    e(f"v_cmp_ne_u32 s[56:57], {NONCE}, v242", f"v_cmp_ne_u32 s[58:59], {NONCE}, v243", f"v_cmp_ne_u32 vcc, {NONCE}, v244", "s_nop 1",
      "s_or_b64 s[56:57], s[56:57], s[58:59]", "s_or_b64 s[56:57], s[56:57], vcc", f"v_cmp_ne_u32 vcc, {NONCE}, v245", "s_nop 1", "s_or_b64 s[56:57], s[56:57], vcc",
      "s_mov_b64 exec, -1", f"v_cmp_ne_u32 vcc, {NONCE}, v246", "s_nop 1", "s_or_b64 s[56:57], s[56:57], vcc",
      "s_cmp_eq_u64 s[56:57], 0", "s_cbranch_scc1 K2_epd", "s_add_u32 s62, s62, 1", f"s_cmp_ge_u32 s62, {SPIN}", "s_cbranch_scc1 K2_epd")
    e(f"s_mov_b32 s56, {FL_H}", "v_lshl_add_u32 v5, v0, 4, s56")
    for n in range(4): e(f"global_load_dword v{242+n}, v5, s[86:87] offset:{1024*n} sc1")
    e(f"global_load_dword v246, v{PU}, s[86:87] sc1", "s_branch K2_ep")
    a.lab("K2_epd")
    e(f"v_mov_b32 v5, {EPO}", f"v_mov_b32 v6, {NONCE}", "s_mov_b64 exec, 1", "global_store_dword v5, v6, s[86:87] sc1")
    a.lab("K2_fin")
    stamp_out(a)
```

```python
import sys
from asmlib import *
import gen
from gen import KN, LOG2E, LN2, H_OFF, H_SZ, U_OFF, U_SZ, X_SZ, W1_SZ, WD_SZ, W2_SZ, SRD3, HEADER, stats_code, lane_masks
W2T_OFF = 0x900000; W2T_SZ = 8*245760
FL = 0xB00000; FL_H = FL; FL_U = FL + 4096; FL_W = FL + 8192; EPO = FL + 16384
SPIN = 200000
STAMP = False
OPT = set()
NONCE = "s65"
def stamp(a, lane, rt=False):
    if STAMP: a.e(f"s_mem{'real' if rt else ''}time s[66:67]", "s_waitcnt lgkmcnt(0)", f"v_writelane_b32 v255, s66, {lane}")
def stamp_out(a):
    if not STAMP: return
    e = a.e
    e("s_waitcnt vmcnt(0)")
    stamp(a, 15); stamp(a, 31, True)
    e("s_lshl_b32 s96, s2, 9", "s_lshl_b32 s97, s24, 7", "s_add_u32 s96, s96, s97", "s_add_u32 s96, s96, 0xF00000")
    e("s_mov_b64 exec, 0xffffffff", "v_lshlrev_b32 v4, 2, v0", "v_add_u32 v4, s96, v4")
    e("global_store_dword v4, v255, s[86:87]", "s_waitcnt vmcnt(0)")

def merge(main, fill, every, start=0):
    out = []; fi = 0; cnt = 0
    for i, m in enumerate(main):
        out.append(m)
        if i >= start:
            cnt += 1
            if cnt >= every and fi < len(fill):
                out += fill[fi]; fi += 1; cnt = 0
    return out, fill[fi:]

class W2L:
    def __init__(s, R): s.n = 0; s.R = R
    def nxt(s):
        n = s.n; s.n += 1
        g = [f"buffer_load_dwordx4 {ar(4*n,4)}, v{s.R}, s[16:19], s94 offen offset:{1024*(n&3)} sc1"]
        if (n & 3) == 3: g.append(f"v_add_u32 v{s.R}, 4096, v{s.R}")
        return g
    def take(s, k): return [s.nxt() for _ in range(min(k, 60 - s.n))]

def k1_half(mf, rd, pre=(), upd=(), groups=(), tail=()):
    n = len(mf); plan = {}
    for i, r in enumerate(rd): plan.setdefault(i, []).append(r)
    for i, p in enumerate(pre): plan.setdefault(i, []).append(p)
    idx = len(rd); ui = 0
    while ui < len(upd):
        j = min(idx, n-1)
        for _ in range(3):
            if ui < len(upd): plan.setdefault(j, []).append(upd[ui]); ui += 1
        idx += 1
    ng = len(groups)
    for gi, g in enumerate(groups):
        j = 1 + (gi * (n-3)) // max(ng, 1)
        plan.setdefault(j, []).extend(g)
    for i, t in enumerate(tail): plan.setdefault(n-2 if i < len(tail)-1 else n-1, []).append(t)
    return slots_merge(mf, plan)

def spin_check(a, name, ld, cmpreg, maskset):
    pass

PAR = {'G1': [5,5,5,5,5,27,11,8], 'DF': [5,5,5,5,5,27,7,8]}
def k1_main(a, name, slot, mf0, mf1, rd1, rd0, addr_regs, dma_groups, nd, soffw_inc, w2l, WP):
    e = a.e
    e("s_mov_b32 s27, 0", f"s_mov_b32 s64, {slot}")
    e(".p2align 5")
    a.lab(f"{name}_loop")
    pre = ["s_and_b32 s33, s27, 3", f"s_mul_i32 s30, s33, {slot}", "s_cmp_eq_u32 s33, 3", f"s_cselect_b32 s32, {-3*slot}, s64"]
    upd = [f"v_add_u32 v{r}, s32, v{r}" for r in addr_regs]
    e(*k1_half(mf0, rd1, pre=pre, upd=upd))
    e(f"s_waitcnt vmcnt({2*nd}) lgkmcnt(0)")
    e("s_barrier")
    if name == "G1":
        e("s_cmp_eq_u32 s27, s92", "s_cbranch_scc1 G1_sig")
        a.lab("G1_sigd")
    tail = ["s_add_u32 s28, s28, 128"] + ([f"s_add_u32 s29, s29, {soffw_inc}"] if soffw_inc else []) + ["s_add_u32 s27, s27, 1", "s_cmp_lt_u32 s27, 6"]
    e(*k1_half(mf1, rd0, groups=dma_groups, tail=tail))
    e("s_waitcnt lgkmcnt(0)")
    e(f"s_cbranch_scc1 {name}_loop")
    pa, pd = WP
    for s in range(6, 10):
        d = -3*slot if (s & 3) == 3 else slot
        upd = [f"v_add_u32 v{r}, {d}, v{r}" for r in addr_regs] if s < 9 else []
        cnt = PAR[name]
        g0 = w2l.take(cnt[2*(s-8)+1]) if s >= 8 else []
        e(*k1_half(mf0, rd1, upd=upd, groups=g0))
        if s == 6: e(f"s_waitcnt vmcnt({2*nd}) lgkmcnt(0)")
        elif s == 7: e("s_waitcnt vmcnt(0) lgkmcnt(0)")
        elif s == 8: e("s_waitcnt lgkmcnt(0)")
        else: e("s_waitcnt lgkmcnt(0)")
        if s < 9 or True: e("s_barrier")
        g1 = []
        if s == 6:
            g1 = [["s_mov_b64 exec, 0x3fffffff", f"global_load_dword v{pd}, v{pa}, s[86:87] sc1", "s_mov_b64 exec, -1"]]
        if s == 7:
            e("s_mov_b64 exec, 0x3fffffff", f"v_cmp_ne_u32 vcc, {NONCE}, v{pd}", "s_mov_b64 exec, -1", "s_nop 2", "s_cbranch_vccnz " + f"{name}_wsp")
            a.lab(f"{name}_wok")
        if s >= 7: g1 = w2l.take(cnt[2*(s-7)])
        e(*k1_half(mf1, rd0 if s < 9 else [], groups=g1))
        if s < 9: e("s_waitcnt lgkmcnt(0)")
    def ool(b):
        ee = b.e
        b.lab(f"{name}_wsp")
        ee("s_mov_b32 s62, 0", "s_mov_b64 exec, 0x3fffffff")
        b.lab(f"{name}_wsp1")
        ee(f"global_load_dword v{pd}, v{pa}, s[86:87] sc1", "s_waitcnt vmcnt(0)", f"v_cmp_ne_u32 vcc, {NONCE}, v{pd}", "s_add_u32 s62, s62, 1", "s_nop 1",
           f"s_cbranch_vccz {name}_wsp2", f"s_cmp_lt_u32 s62, {SPIN}", f"s_cbranch_scc1 {name}_wsp1")
        b.lab(f"{name}_wsp2")
        ee("s_mov_b64 exec, -1", f"s_branch {name}_wok")
    return ool

def gen_f(a):
    e = a.e
    ools = []
    e("s_cmp_ge_u32 s2, 256", "s_cbranch_scc1 F_end")
    e("s_load_dwordx16 s[36:51], s[0:1], 0")
    e("s_load_dwordx2 s[86:87], s[0:1], 80")
    e("s_load_dwordx2 s[20:21], s[0:1], 64")
    if STAMP: e("v_mov_b32 v255, 0")
    stamp(a, 30, True); stamp(a, 0)
    e("v_lshrrev_b32 v1, 6, v0", "v_and_b32 v0, 63, v0")
    e("v_readfirstlane_b32 s24, v1")
    e("s_and_b32 s88, s2, 7", "s_lshr_b32 s89, s2, 3", "s_lshr_b32 s56, s88, 1", "s_lshl_b32 s56, s56, 2",
      "s_and_b32 s57, s89, 3", "s_add_u32 s25, s56, s57", "s_lshr_b32 s58, s89, 2", "s_and_b32 s59, s88, 1")
    e("s_lshl_b32 s56, s56, 1", "s_and_b32 s57, s89, 7", "s_add_u32 s90, s56, s57",
      "s_lshl_b32 s56, s59, 2", "s_lshr_b32 s57, s89, 3", "s_add_u32 s91, s56, s57")
    e("v_and_b32 v1, 15, v0", "v_lshrrev_b32 v2, 4, v0", "v_lshrrev_b32 v3, 3, v0", "v_and_b32 v4, 7, v0")
    e(f"s_mov_b32 s6, {X_SZ}", f"s_mov_b32 s7, {SRD3}", f"s_mov_b32 s11, {SRD3}", f"s_mov_b32 s15, {SRD3}", f"s_mov_b32 s19, {SRD3}",
      f"s_mov_b32 s22, {X_SZ}", f"s_mov_b32 s23, {SRD3}")
    e("s_lshl_b32 s60, s25, 2", "s_add_u32 s60, s60, s24", "s_mul_i32 s61, s60, 1280", "s_lshl_b32 s34, s24, 12")
    e("s_mul_i32 s94, s91, 245760", "s_mul_i32 s56, s24, 61440", "s_add_u32 s94, s94, s56")
    e(f"v_mov_b32 v27, {EPO}")
    e("s_sub_u32 s3, s2, 64")
    e("s_cmp_lt_u32 s58, 2", "s_cbranch_scc1 K1_dft")
    XV, WV, WA, XA0, XA1 = 8, 12, 16, 24, 25
    NV, W2R, PA, PD = 26, 254, 29, 30
    ACC, CS, SUM, SQ, ONES = 32, 96, 104, 112, 120
    A0, B0, A1, B1 = 124, 156, 164, 196
    T = 204
    PF, PL, PG, PW, PR = 164, 180, 204+16, 204+17, 204+18
    e("s_mul_i32 s26, s59, 6", "s_add_u32 s26, s26, s58", "s_sub_u32 s26, s26, 2")
    e("v_xor_b32 v5, v4, v2", "v_lshlrev_b32 v5, 4, v5")
    e("v_mov_b32 v7, 81920", "v_mul_u32_u24 v6, v7, v3")
    e("v_add3_u32 v6, v6, v5, s61")
    e(f"v_mov_b32 v{XV}, v6")
    e(f"v_xor_b32 v7, 64, v6")
    e(f"v_add_u32 v{XV+1}, {8*81920-1024}, v7")
    e(f"v_add_u32 v{XV+2}, {16*81920-2048}, v6")
    e(f"v_add_u32 v{XV+3}, {24*81920-3072}, v7")
    e("s_lshl_b32 s62, s24, 4", "v_add_u32 v5, s62, v2", "v_mul_u32_u24 v5, 3072, v5")
    e("v_lshlrev_b32 v6, 1, v2", "v_xor_b32 v6, v6, v1", "v_lshlrev_b32 v6, 4, v6")
    e("s_lshl_b32 s62, s26, 8", "v_add3_u32 v5, v5, v6, s62")
    e(f"v_mov_b32 v{WV}, v5", "v_xor_b32 v6, 128, v5")
    e(f"v_add_u32 v{WV+1}, {8*3072-1024}, v6")
    e(f"v_add_u32 v{WV+2}, {4*3072-2048}, v5")
    e(f"v_add_u32 v{WV+3}, {12*3072-3072}, v6")
    e("s_mul_i32 s56, s3, 2185", "s_lshr_b32 s56, s56, 16")
    e("s_mul_i32 s57, s56, 30", "s_sub_u32 s57, s3, s57")
    e("s_lshl_b32 s93, s56, 9", "s_lshl_b32 s62, s57, 4", "s_add_u32 s93, s93, s62", f"s_add_u32 s93, s93, {FL_W}")
    e("s_lshl_b32 s57, s57, 2", "s_add_u32 s57, s57, s24")
    e("s_mul_i32 s62, s57, 13108", "s_lshr_b32 s62, s62, 16")
    e("s_mul_i32 s63, s62, 5", "s_sub_u32 s63, s57, s63")
    e("s_mul_i32 s95, s62, 81920", "s_mul_i32 s57, s56, 320", "s_add_u32 s95, s95, s57", "s_lshl_b32 s57, s63, 6", "s_add_u32 s95, s95, s57")
    e("s_mul_i32 s56, s56, 491520", "s_mul_i32 s62, s62, 10240", "s_add_u32 s56, s56, s62")
    e("s_lshl_b32 s63, s63, 11")
    e(f"s_add_u32 s57, s63, {245760-5120}", "s_cmp_ge_u32 s63, 5120", "s_cselect_b32 s98, s57, s63", "s_add_u32 s98, s98, s56")
    e("s_add_u32 s63, s63, 1024", f"s_add_u32 s57, s63, {245760-5120}", "s_cmp_ge_u32 s63, 5120", "s_cselect_b32 s99, s57, s63", "s_add_u32 s99, s99, s56")
    e(f"v_lshrrev_b32 v5, 2, v0", "v_and_b32 v6, 3, v0", "v_mul_u32_u24 v7, 1280, v5", f"v_lshl_add_u32 v{PG}, v6, 4, v7")
    e("s_cmp_lt_u32 s3, 120", "s_cselect_b32 s92, 2, 99", "s_cmp_eq_u32 s24, 0", "s_cselect_b32 s92, s92, 99")
    e("s_waitcnt lgkmcnt(0)")
    stamp(a, 1)
    e("global_load_dword v26, v27, s[86:87] sc1")
    e("s_mov_b32 s4, s36", "s_mov_b32 s5, s37", "s_mov_b32 s8, s48", "s_mov_b32 s9, s49", f"s_mov_b32 s10, {W1_SZ}")
    e("s_mov_b32 s16, s50", "s_mov_b32 s17, s51", f"s_mov_b32 s18, {W2_SZ}")
    e("s_cmp_ge_u32 s3, 120", "s_cbranch_scc1 G1_nopre1")
    for n in range(4):
        e(f"buffer_load_dwordx4 {vr(PL+4*n,4)}, v{PG}, s[16:19], s95 offen")
        if n < 3: e("s_add_u32 s95, s95, 20480")
    a.lab("G1_nopre1")
    def g1_dma(m0x, m0w):
        g = []
        g.append([f"s_add_u32 m0, {m0x[0]}, {m0x[1]}", "s_nop 0", f"buffer_load_dwordx4 v{XV}, s[4:7], s28 offen lds"])
        for j in range(1, 4): g.append([f"buffer_load_dwordx4 v{XV+j}, s[4:7], s28 offen offset:{1024*j} lds"])
        g.append([f"s_add_u32 m0, {m0w[0]}, {m0w[1]}", "s_nop 0", f"buffer_load_dwordx4 v{WV}, s[8:11], s29 offen lds"])
        for j in range(1, 4): g.append([f"buffer_load_dwordx4 v{WV+j}, s[8:11], s29 offen offset:{1024*j} lds"])
        return g
    e("s_mov_b32 s28, 0", "s_mov_b32 s29, 0", "s_add_u32 s35, s34, 16384")
    dm = []
    for st in range(4):
        gs = g1_dma(("s34", st*32768), ("s35", st*32768))
        gs[-1] = gs[-1] + ["s_add_u32 s28, s28, 128", "s_add_u32 s29, s29, 196608"]
        dm += gs
    S = A(); se = S.e
    se(f"v_lshrrev_b32 v5, 1, v1", "v_xor_b32 v5, v5, v2", "v_lshlrev_b32 v5, 4, v5")
    se(f"v_lshl_add_u32 v5, v1, 7, v5", f"v_add_u32 v{XA0}, s34, v5", f"v_xor_b32 v{XA1}, 64, v{XA0}")
    se("v_lshrrev_b32 v5, 2, v1", "v_and_b32 v6, 1, v2", "v_lshl_add_u32 v5, v6, 2, v5")
    se("v_lshrrev_b32 v6, 1, v2", "v_lshl_add_u32 v6, v6, 4, v5")
    se("v_lshlrev_b32 v6, 8, v6", "v_and_b32 v7, 3, v1", "v_lshl_add_u32 v6, v7, 3, v6", "v_add_u32 v6, 16384, v6")
    for t in range(8):
        se("s_lshl_b32 s62, s24, 1", f"s_add_u32 s62, s62, {t}", "s_and_b32 s62, s62, 7",
           "v_xor_b32 v7, s62, v5", f"v_lshl_add_u32 v{WA+t}, v7, 5, v6")
    lane_masks(S, T)
    for r in range(ACC, ONES): se(f"v_mov_b32 v{r}, 0")
    for r in range(ONES, ONES+4): se(f"v_mov_b32 v{r}, 0x3f803f80")
    common_setup(S, W2R, PA, PW, PR)
    L = S.L; k = (len(L) + len(dm) - 5) // (len(dm) - 4)
    pos = 0
    for gi, g in enumerate(dm):
        e(*g)
        if gi >= 4:
            e(*L[pos:pos+k]); pos += k
    e(*L[pos:])
    stamp(a, 2)
    e("s_waitcnt vmcnt(32)")
    nonce_calc(a, 26)
    e("s_mov_b32 s16, s86", "s_mov_b32 s17, s87", f"s_add_u32 s16, s16, {W2T_OFF}", "s_addc_u32 s17, s17, 0", f"s_mov_b32 s18, {W2T_SZ}")
    e("s_cmp_ge_u32 s3, 120", "s_cbranch_scc1 G1_nopre2")
    for n in range(4): e(f"ds_write_b128 v{PW}, {vr(PL+4*n,4)} offset:{16*80*n}")
    for k2 in range(2):
        for nt in range(2):
            for hf in range(2):
                e(f"ds_read_b64_tr_b16 {vr(PF+8*k2+4*nt+2*hf,2)}, v{PR} offset:{k2*32*80+hf*16*80+nt*32}")
    e("v_lshlrev_b32 v5, 4, v0", "s_waitcnt lgkmcnt(0)")
    for k2 in range(2):
        for nt in range(2):
            e(f"buffer_store_dwordx4 {vr(PF+8*k2+4*nt,4)}, v5, s[16:19], s{98+nt} offen offset:{0} sc1" if k2 == 0 else
              f"buffer_store_dwordx4 {vr(PF+8*k2+4*nt,4)}, v5, s[16:19], s{98+nt} offen offset:{0} sc1")
        if k2 == 0: e("s_add_u32 s98, s98, 5120", "s_add_u32 s99, s99, 5120")
    e("s_waitcnt vmcnt(28)", "s_branch G1_pre_done")
    a.lab("G1_nopre2")
    e("s_waitcnt vmcnt(24)")
    a.lab("G1_pre_done")
    def g1_mf(Ab, Bb):
        m = []
        for t in range(8):
            for mt in range(2): m.append(mfma(ACC + (t*2+mt)*4, Ab + 4*t, Bb + 4*mt))
            if t < 2: m.append(mfma(CS + 4*t, Ab + 4*t, ONES))
            if t in (2, 3): m.append(mfma(SUM + 4*(t-2), ONES, Bb + 4*(t-2)))
            if t in (4, 5): m.append(mfma(SQ + 4*(t-4), Bb + 4*(t-4), Bb + 4*(t-4)))
        return m
    def g1_rd(Ab, Bb, xa, kk):
        r = []
        for mt in range(2): r.append(f"ds_read_b128 {vr(Bb+4*mt,4)}, v{xa} offset:{2048*mt}")
        for t in range(8):
            for hf in range(2): r.append(f"ds_read_b64_tr_b16 {vr(Ab+4*t+2*hf,2)}, v{WA+t} offset:{kk*8192+hf*2048}")
        return r
    e("s_barrier")
    stamp(a, 3)
    e(*g1_rd(A0, B0, XA0, 0))
    e("s_mov_b32 s28, 512", f"s_mov_b32 s29, {4*196608}")
    e("s_waitcnt lgkmcnt(0)")
    w2l = W2L(W2R)
    ool = k1_main(a, "G1", 32768, g1_mf(A0, B0), g1_mf(A1, B1), g1_rd(A1, B1, XA1, 1), g1_rd(A0, B0, XA0, 0),
            [WA+t for t in range(8)] + [XA0, XA1], g1_dma(("s30", "s34"), ("s30", "s35")), 8, 196608, w2l, (PA, PD))
    ools.append(ool)
    def sig(b):
        b.lab("G1_sig")
        b.e("v_mov_b32 v5, s93", f"v_mov_b32 v6, {NONCE}", "s_mov_b64 exec, 1", "global_store_dword v5, v6, s[86:87] sc1", "s_mov_b64 exec, -1", "s_branch G1_sigd")
    ools.append(sig)
    stamp(a, 4)
    E = A(); ee = E.e
    ee("s_nop 7", "s_nop 7")
    ee("s_lshl_b32 s62, s24, 7", "s_add_u32 s62, s62, 131072")
    ee(f"v_lshl_add_u32 v5, v2, 4, s62")
    ee(f"ds_write_b128 v5, {vr(CS,4)}", f"ds_write_b128 v5, {vr(CS+4,4)} offset:64")
    MB, RS = [T+12, T+13], [T+14, T+15]
    stats_code(E, [SUM, SUM+4], [SQ, SQ+4], T, [(MB[0], RS[0]), (MB[1], RS[1])])
    for mt in range(2): ee(f"v_mul_f32 v{RS[mt]}, {fhex(-LOG2E)}, v{RS[mt]}")
    ee("s_waitcnt lgkmcnt(0)", "s_barrier")
    stamp(E, 11)
    CSR = A0
    for t in range(8):
        ee("s_lshl_b32 s62, s24, 1", f"s_add_u32 s62, s62, {t}", "s_and_b32 s62, s62, 7", "s_lshl_b32 s62, s62, 6", "s_add_u32 s62, s62, 131072",
           f"v_lshl_add_u32 v5, v2, 4, s62", f"ds_read_b128 {vr(CSR+4*t,4)}, v5")
    ee("s_mov_b32 s12, s86", "s_mov_b32 s13, s87", f"s_mov_b32 s14, {H_SZ}")
    ee("s_and_b32 s62, s60, 31", "s_mul_i32 s62, s62, 48", "s_lshl_b32 s63, s26, 2", "s_add_u32 s62, s62, s63", "s_lshl_b32 s62, s62, 2",
       "s_lshr_b32 s63, s25, 3", "s_lshl_b32 s63, s63, 1", "s_add_u32 s62, s62, s63", "s_lshl_b32 s62, s62, 10")
    ee("v_lshlrev_b32 v6, 4, v0")
    ee("s_waitcnt lgkmcnt(0)")
    TT = A1
    stamp(E, 12)
    for u in range(4):
        ee(f"s_add_u32 s63, s24, {u}", "s_and_b32 s63, s63, 3", "s_lshl_b32 s63, s63, 12", "s_add_u32 s63, s63, s62")
        for mt in range(2):
            tb = TT + ((u*2+mt) & 1) * 20
            z = tb; ex = tb + 8; pk = tb + 16
            vals = [(ACC + ((2*u+h)*2+mt)*4 + r, CSR + (2*u+h)*4 + r) for h in range(2) for r in range(4)]
            for k, (ac, cs) in enumerate(vals): ee(f"v_fma_f32 v{z+k}, -v{MB[mt]}, v{cs}, v{ac}")
            for k in range(0, 8, 2): ee(f"v_pk_mul_f32 {vr(z+k,2)}, {vr(z+k,2)}, {vr(RS[mt]&~1,2)} op_sel:[0,{RS[mt]&1}] op_sel_hi:[1,{RS[mt]&1}]")
            for k in range(8): ee(f"v_exp_f32 v{ex+k}, v{z+k}")
            for k in range(0, 8, 2): ee(f"v_pk_add_f32 {vr(ex+k,2)}, {vr(ex+k,2)}, 1.0 op_sel_hi:[1,0]")
            for k in range(8): ee(f"v_rcp_f32 v{ex+k}, v{ex+k}")
            for k in range(0, 8, 2): ee(f"v_pk_mul_f32 {vr(z+k,2)}, {vr(z+k,2)}, {vr(ex+k,2)}")
            for k in range(4): ee(f"v_cvt_pk_bf16_f32 v{pk+k}, v{z+2*k}, v{z+2*k+1}")
            ee(f"buffer_store_dwordx4 {vr(pk,4)}, v6, s[12:15], s63 offen offset:{1024*mt} sc1")
    out, left = merge_safe(E.L, w2l.take(PAR['G1'][5]), PAR['G1'][6], start=4)
    e(*out)
    for g in left: e(*g)
    stamp(a, 5)
    rest = w2l.take(60)
    e("s_mul_i32 s56, s26, 22", "s_lshr_b32 s56, s56, 6", "s_mul_i32 s57, s56, 3", "s_sub_u32 s57, s26, s57", "s_lshl_b32 s57, s57, 1",
      "s_lshr_b32 s62, s25, 3", "s_add_u32 s57, s57, s62", "s_lshl_b32 s57, s57, 4", "s_lshl_b32 s56, s56, 7", "s_add_u32 s57, s57, s56",
      "s_and_b32 s56, s25, 7", "s_lshl_b32 s56, s56, 9", "s_add_u32 s57, s57, s56", f"s_add_u32 s93, s57, {FL_H}")
    publish(a, "G1", rest, PAR['G1'][7])
    e("s_branch K2_start")
    a.lab("K1_dft")
    XV, DV, XA0, XA1, BA0, BA1 = 8, 12, 17, 18, 19, 20
    NV, W2R, PA, PD = 26, 28, 29, 30
    ACC, SUM, SQ, ONES = 32-8, 104, 112, 120
    ACC = 24
    W2R, PA, PD = 254, 253, 252
    A0, B0, A1, B1 = 124, 132, 172, 180
    WC = 220
    e("s_lshl_b32 s26, s59, 1", "s_add_u32 s26, s26, s58")
    e("v_xor_b32 v5, v4, v2", "v_lshlrev_b32 v5, 4, v5")
    e("v_lshrrev_b32 v6, 2, v3", "v_and_b32 v7, 3, v3", "v_lshl_add_u32 v6, v6, 3, v7")
    e("v_mov_b32 v7, 81920", "v_mul_u32_u24 v6, v7, v6")
    e("v_add3_u32 v6, v6, v5, s61")
    e(f"v_mov_b32 v{XV}, v6", "v_xor_b32 v7, 64, v6")
    e(f"v_add_u32 v{XV+1}, {16*81920-1024}, v7")
    e(f"v_add_u32 v{XV+2}, {4*81920-2048}, v6")
    e(f"v_add_u32 v{XV+3}, {20*81920-3072}, v7")
    e("s_and_b32 s62, s24, 1", "s_lshl_b32 s63, s62, 2", "v_add_u32 v5, s63, v2", "v_xor_b32 v5, v5, v4", "v_lshlrev_b32 v5, 4, v5")
    e("s_mul_i32 s63, s26, 80", "s_lshl_b32 s62, s62, 3", "s_add_u32 s63, s63, s62", "v_add_u32 v6, s63, v3")
    e("v_mov_b32 v7, 1280", "v_mad_u32_u24 v21, v6, v7, v5")
    for j in range(1, 5): e(f"v_add_u32 v{DV+j}, {16*1280*j - (1024*j if j < 4 else 0)}, v21")
    e("v_cmp_eq_u32 vcc, 0, v6", f"v_add_u32 v22, {320*1280}, v21", "s_nop 0", f"v_cndmask_b32 v{DV}, v21, v22, vcc")
    e("v_lshlrev_b32 v5, 18, v1", "v_lshl_add_u32 v5, v2, 4, v5", f"v_add_u32 v6, {16*262144}, v5")
    e("s_mov_b32 s28, 0", "s_mul_i32 s35, s24, 5120", "s_add_u32 s35, s35, 16384")
    e("s_waitcnt lgkmcnt(0)")
    stamp(a, 1)
    e("global_load_dword v23, v27, s[86:87] sc1")
    e("s_mov_b32 s4, s36", "s_mov_b32 s5, s37")
    e("s_cmp_ge_u32 s24, 2", "s_cselect_b32 s8, s44, s42", "s_cselect_b32 s9, s45, s43", f"s_mov_b32 s10, {WD_SZ}")
    def dft_dma(base0, base1):
        g = []
        g.append([f"s_add_u32 m0, {base0[0]}, {base0[1]}", "s_nop 0", f"buffer_load_dwordx4 v{XV}, s[4:7], s28 offen lds"])
        for j in range(1, 4): g.append([f"buffer_load_dwordx4 v{XV+j}, s[4:7], s28 offen offset:{1024*j} lds"])
        g.append([f"s_add_u32 m0, {base1[0]}, {base1[1]}", "s_nop 0", f"buffer_load_dwordx4 v{DV}, s[8:11], s28 offen lds"])
        for j in range(1, 4): g.append([f"buffer_load_dwordx4 v{DV+j}, s[8:11], s28 offen offset:{1024*j} lds"])
        g.append(["s_add_u32 m0, m0, 4096", "s_nop 0", f"buffer_load_dwordx4 v{DV+4}, s[8:11], s28 offen lds"])
        return g
    dm = []
    for st in range(4):
        gs = dft_dma(("s34", st*36864), ("s35", st*36864))
        gs[-1] = gs[-1] + ["s_add_u32 s28, s28, 128"]
        dm += gs
        if st == 0:
            dm.append([f"global_load_dwordx4 {vr(WC,4)}, v5, s[38:39]", f"global_load_dwordx4 {vr(WC+4,4)}, v6, s[38:39]",
                       f"global_load_dwordx4 {vr(WC+8,4)}, v5, s[40:41]", f"global_load_dwordx4 {vr(WC+12,4)}, v6, s[40:41]"])
    T = 236
    S = A(); se = S.e
    se(f"v_lshrrev_b32 v7, 1, v1", "v_xor_b32 v7, v7, v2", "v_lshlrev_b32 v7, 4, v7")
    se(f"v_lshl_add_u32 v21, v1, 7, v7", f"v_add_u32 v{XA0}, s34, v21", f"v_xor_b32 v{XA1}, 64, v{XA0}")
    se("v_lshrrev_b32 v21, 3, v1", "v_mul_u32_u24 v21, 5120, v21", "v_and_b32 v22, 7, v1", "v_lshl_add_u32 v21, v22, 7, v21")
    se(f"v_add_u32 v21, v21, v7", f"v_add_u32 v{BA0}, 16384, v21", f"v_xor_b32 v{BA1}, 64, v{BA0}")
    for r in range(ACC, ONES): se(f"v_mov_b32 v{r}, 0")
    for r in range(ONES, ONES+4): se(f"v_mov_b32 v{r}, 0x3f803f80")
    lane_masks(S, T)
    common_setup(S, W2R, PA, None, None)
    L = S.L; k = (len(L) + len(dm) - 11) // (len(dm) - 10)
    pos = 0
    for gi, g in enumerate(dm):
        e(*g)
        if gi >= 10:
            e(*L[pos:pos+k]); pos += k
    e(*L[pos:])
    stamp(a, 2)
    e("s_waitcnt vmcnt(31)")
    nonce_calc(a, 23)
    e("s_mov_b32 s16, s86", "s_mov_b32 s17, s87", f"s_add_u32 s16, s16, {W2T_OFF}", "s_addc_u32 s17, s17, 0", f"s_mov_b32 s18, {W2T_SZ}")
    def dacc(p, part, mt): return ACC + ((p*2+part)*2+mt)*4
    def dft_mf(Ab, Bb):
        m = []
        for p in range(5):
            for part in range(2):
                for mt in range(2): m.append(mfma(dacc(p, part, mt), Ab + 4*mt, Bb + (part*5+p)*4))
            if p < 2: m.append(mfma(SUM + 4*p, ONES, Ab + 4*p))
            if p in (2, 3): m.append(mfma(SQ + 4*(p-2), Ab + 4*(p-2), Ab + 4*(p-2)))
        return m
    def dft_rd(Ab, Bb, xa, ba):
        r = []
        for mt in range(2): r.append(f"ds_read_b128 {vr(Ab+4*mt,4)}, v{xa} offset:{2048*mt}")
        for p in range(5):
            for part in range(2): r.append(f"ds_read_b128 {vr(Bb+(part*5+p)*4,4)}, v{ba} offset:{part*10240+p*1024}")
        return r
    e("s_barrier")
    stamp(a, 3)
    e(*dft_rd(A0, B0, XA0, BA0))
    e("s_mov_b32 s28, 512")
    e("s_waitcnt lgkmcnt(0)")
    w2l = W2L(W2R)
    ool = k1_main(a, "DF", 36864, dft_mf(A0, B0), dft_mf(A1, B1), dft_rd(A1, B1, XA1, BA1), dft_rd(A0, B0, XA0, BA0),
            [XA0, XA1, BA0, BA1], dft_dma(("s30", "s34"), ("s30", "s35")), 9, 0, w2l, (PA, PD))
    ools.append(ool)
    stamp(a, 4)
    E = A(); ee = E.e
    ee("s_nop 7", "s_nop 7")
    MB, RS = [T+12, T+13], [T+14, T+15]
    stats_code(E, [SUM, SUM+4], [SQ, SQ+4], T, [(MB[0], RS[0]), (MB[1], RS[1])])
    RR = A0
    ee("v_lshlrev_b32 v5, 4, v2")
    for mt in range(2):
        for r in range(4): ee(f"v_add_u32 v6, {4*r}, v5", f"ds_bpermute_b32 v{RR+mt*4+r}, v6, v{RS[mt]}")
    for k in range(8): ee(f"v_xor_b32 v{WC+16+k}, 0x80008000, v{WC+8+k}")
    ee("s_waitcnt lgkmcnt(0)")
    stamp(E, 11)
    PK = B0
    for p in range(5):
        for part in range(2):
            for mt in range(2):
                ac = dacc(p, part, mt)
                for r in range(0, 4, 2): ee(f"v_pk_mul_f32 {vr(ac+r,2)}, {vr(ac+r,2)}, {vr(RR+mt*4+r,2)}")
            for mt in range(2):
                ac = dacc(p, part, mt)
                for h in range(2): ee(f"v_cvt_pk_bf16_f32 v{PK+8*p+4*part+2*mt+h}, v{ac+2*h}, v{ac+2*h+1}")
    ee("s_nop 1")
    def ud(p, nt, c): return ACC + p*16 + nt*8 + 4*c
    for p in range(5):
        aa, bb = PK+8*p, PK+8*p+4
        for nt in range(2):
            ee(mfma0(ud(p, nt, 0), aa, WC + 4*nt)); ee(mfma0(ud(p, nt, 1), aa, WC + 8 + 4*nt))
        for nt in range(2):
            ee(mfma(ud(p, nt, 0), bb, WC + 16 + 4*nt)); ee(mfma(ud(p, nt, 1), bb, WC + 4*nt))
    ee(f"s_mov_b32 s14, {U_SZ}", "s_mov_b32 s12, s86", "s_mov_b32 s13, s87")
    ee(f"s_add_u32 s12, s12, {U_OFF}", "s_addc_u32 s13, s13, 0")
    ee("s_mul_i32 s62, s60, 80", "s_mul_i32 s63, s26, 20", "s_add_u32 s62, s62, s63", "s_lshl_b32 s62, s62, 4")
    ee("v_mov_b32 v7, 81920", "v_mul_u32_u24 v5, v7, v1", "v_lshl_add_u32 v5, v2, 4, v5", f"v_add_u32 v6, {16*81920}, v5")
    ee("s_nop 7")
    stamp(E, 12)
    k = 0
    for p in range(5):
        for nt in range(2):
            tb = A1 + (k % 4) * 4; k += 1
            re, im = ud(p, nt, 0), ud(p, nt, 1)
            ee(f"v_cvt_pk_bf16_f32 v{tb}, v{re}, v{re+1}", f"v_cvt_pk_bf16_f32 v{tb+1}, v{re+2}, v{re+3}",
               f"v_cvt_pk_bf16_f32 v{tb+2}, v{im}, v{im+1}", f"v_cvt_pk_bf16_f32 v{tb+3}, v{im+2}, v{im+3}")
            ee(f"buffer_store_dwordx4 {vr(tb,4)}, v{5+nt}, s[12:15], s62 offen offset:{64*p} sc1")
    out, left = merge_safe(E.L, w2l.take(PAR['DF'][5]), PAR['DF'][6], start=4)
    e(*out)
    for g in left: e(*g)
    stamp(a, 5)
    rest = w2l.take(60)
    e("s_lshl_b32 s57, s26, 4", "s_add_u32 s57, s57, s25", "s_lshl_b32 s57, s57, 4", f"s_add_u32 s93, s57, {FL_U}")
    publish(a, "DF", rest, PAR['DF'][7])
    a.lab("K2_start")
    from gen2k2 import gen_k2f
    gen_k2f(a, ools, stamp, stamp_out)
    a.lab("F_end")
    e("s_endpgm")
    for o in ools: o(a)

def merge_safe(main, fill, every, start=0):
    out = []; fi = 0; cnt = 0
    for i, m in enumerate(main):
        out.append(m)
        if i >= start:
            cnt += 1
            nxt = main[i+1] if i+1 < len(main) else ""
            if cnt >= every and fi < len(fill) and not nxt.startswith(("s_addc", "s_cselect", "s_cbranch", "v_cndmask")):
                out += fill[fi]; fi += 1; cnt = 0
    return out, fill[fi:]

def nonce_calc(a, v):
    a.e("s_nop 0", f"v_readfirstlane_b32 {NONCE}, v{v}", "s_nop 3", f"s_mul_i32 {NONCE}, {NONCE}, 0x9E3779B1", f"s_add_u32 {NONCE}, {NONCE}, 0x7F4A7C15")

def common_setup(S, W2R, PA, PW, PR):
    se = S.e
    se(f"v_lshlrev_b32 v{W2R}, 4, v0")
    se("s_lshr_b32 s62, s91, 1", "s_lshl_b32 s62, s62, 9", f"s_add_u32 s62, s62, {FL_W}", f"v_lshl_add_u32 v{PA}, v0, 4, s62")
    if PW is not None:
        se("s_mul_i32 s62, s24, 5120", "s_add_u32 s62, s62, 131072")
        se("v_lshrrev_b32 v7, 2, v0", "v_mul_u32_u24 v7, 80, v7", "v_and_b32 v6, 3, v0", "v_lshl_add_u32 v7, v6, 4, v7", f"v_add_u32 v{PW}, s62, v7")
        se("v_lshrrev_b32 v7, 2, v1", "v_lshl_add_u32 v7, v2, 2, v7", "v_mul_u32_u24 v7, 80, v7", "v_lshl_add_u32 v7, v6, 3, v7", f"v_add_u32 v{PR}, s62, v7")

def publish(a, name, rest, npre):
    e = a.e
    from gen2k2 import k2_setup
    nrest = min(npre, len(rest))
    for g in rest[:nrest]: e(*g)
    k2_setup(a)
    import gen2k2
    stamp(a, 13)
    e(f"s_waitcnt vmcnt({nrest + gen2k2.K2_SETUP_VM})")
    stamp(a, 14)
    e("s_barrier")
    stamp(a, 6)
    e("s_cmp_lg_u32 s24, 0", f"s_cbranch_scc1 {name}_pubd")
    e("v_mov_b32 v5, s93", f"v_mov_b32 v6, {NONCE}", "s_mov_b64 exec, 1", "global_store_dword v5, v6, s[86:87] sc1", "s_mov_b64 exec, -1")
    a.lab(f"{name}_pubd")
    for g in rest[nrest:]: e(*g)

def build():
    lab = "f_kernel" if 'list' in OPT else KN + "_kernel"
    out = HEADER
    if 'list' in OPT: out += f"; @launch kernel={lab} grid=(256,1,1) block=(256,1,1) lds=160768\n"
    else: out += f"; @launch grid=(256,1,1) block=(256,1,1) lds=160768\n"
    out += '.amdgcn_target "amdgcn-amd-amdhsa--gfx950"\n.text\n'
    a = A(); gen_f(a)
    out += f".globl {lab}\n.p2align 8\n.type {lab},@function\n{lab}:\n" + a.text()
    out += '.section .rodata,"a"\n.p2align 6\n' + gen.kernel_desc(lab, 256, 256, 512)
    return out

if __name__ == "__main__":
    out = sys.argv[1]
    if len(sys.argv) > 2:
        for o in sys.argv[2].split(','):
            if o == 'st': STAMP = True
            elif o.startswith('US='):
                import gen2k2; gen2k2.USTEP = int(o[3:])
            elif o.startswith('G1=') or o.startswith('DF='): PAR[o[:2]] = [int(x) for x in o[3:].split('.')]
            else: OPT.add(o)
    import gen2k2
    gen2k2.OPT = OPT; gen2k2.STAMP = STAMP
    open(out, "w").write(build())
```

```python
import sys
from asmlib import *
import gen
from gen import KN, LOG2E, LN2, H_OFF, H_SZ, U_OFF, U_SZ, X_SZ, W1_SZ, WD_SZ, W2_SZ, SRD3, HEADER, stats_code, lane_masks
W2T_OFF = 0x900000; W2T_SZ = 8*245760
FL = 0xB00000; FL_H = FL; FL_U = FL + 4096; FL_W = FL + 8192; EPO = FL + 16384
SPIN = 200000
STAMP = False
OPT = set()
NONCE = "s65"
def stamp(a, lane, rt=False):
    if STAMP: a.e(f"s_mem{'real' if rt else ''}time s[66:67]", "s_waitcnt lgkmcnt(0)", f"v_writelane_b32 v255, s66, {lane}")
def stamp_out(a):
    if not STAMP: return
    e = a.e
    e("s_waitcnt vmcnt(0)")
    stamp(a, 15); stamp(a, 31, True)
    e("s_lshl_b32 s96, s2, 9", "s_lshl_b32 s97, s24, 7", "s_add_u32 s96, s96, s97", "s_add_u32 s96, s96, 0xF00000")
    e("s_mov_b64 exec, 0xffffffff", "v_lshlrev_b32 v4, 2, v0", "v_add_u32 v4, s96, v4")
    e("global_store_dword v4, v255, s[86:87]", "s_waitcnt vmcnt(0)")

def merge(main, fill, every, start=0):
    out = []; fi = 0; cnt = 0
    for i, m in enumerate(main):
        out.append(m)
        if i >= start:
            cnt += 1
            if cnt >= every and fi < len(fill):
                out += fill[fi]; fi += 1; cnt = 0
    return out, fill[fi:]

class W2L:
    def __init__(s, R): s.n = 0; s.R = R
    def nxt(s):
        n = s.n; s.n += 1
        g = [f"buffer_load_dwordx4 {ar(4*n,4)}, v{s.R}, s[16:19], s94 offen offset:{1024*(n&3)} sc1"]
        if (n & 3) == 3: g.append(f"v_add_u32 v{s.R}, 4096, v{s.R}")
        return g
    def take(s, k): return [s.nxt() for _ in range(min(k, 60 - s.n))]

def k1_half(mf, rd, pre=(), upd=(), groups=(), tail=()):
    n = len(mf); plan = {}
    for i, r in enumerate(rd): plan.setdefault(i, []).append(r)
    for i, p in enumerate(pre): plan.setdefault(i, []).append(p)
    idx = len(rd); ui = 0
    while ui < len(upd):
        j = min(idx, n-1)
        for _ in range(3):
            if ui < len(upd): plan.setdefault(j, []).append(upd[ui]); ui += 1
        idx += 1
    ng = len(groups)
    for gi, g in enumerate(groups):
        j = 1 + (gi * (n-3)) // max(ng, 1)
        plan.setdefault(j, []).extend(g)
    for i, t in enumerate(tail): plan.setdefault(n-2 if i < len(tail)-1 else n-1, []).append(t)
    return slots_merge(mf, plan)

def spin_check(a, name, ld, cmpreg, maskset):
    pass

PAR = {'G1': [5,5,5,5,5,27,11,8], 'DF': [5,5,5,5,5,27,7,8]}
def k1_main(a, name, slot, mf0, mf1, rd1, rd0, addr_regs, dma_groups, nd, soffw_inc, w2l, WP, mf0z, dma_st):
    e = a.e
    updc = [f"v_add_u32 v{r}, {slot}, v{r}" for r in addr_regs]
    e(*k1_half(mf0z, rd1, upd=updc, groups=dma_st(2)))
    if name == "G1":
        e("s_cmp_ge_u32 s3, 120", "s_cbranch_scc1 G1_w0a", f"s_waitcnt vmcnt({nd+4}) lgkmcnt(0)", "s_branch G1_w0b")
        a.lab("G1_w0a")
        e(f"s_waitcnt vmcnt({nd}) lgkmcnt(0)")
        a.lab("G1_w0b")
    else:
        e(f"s_waitcnt vmcnt({nd}) lgkmcnt(0)")
    e("s_barrier")
    e(*k1_half(mf1, rd0, groups=dma_st(3)))
    e("s_waitcnt lgkmcnt(0)")
    e(*k1_half(mf0, rd1, upd=updc, groups=dma_st(4)))
    e(f"s_waitcnt vmcnt({2*nd}) lgkmcnt(0)")
    e("s_barrier")
    e(*k1_half(mf1, rd0, groups=dma_st(5)))
    e("s_waitcnt lgkmcnt(0)")
    e("s_mov_b32 s27, 2", f"s_mov_b32 s64, {slot}")
    e(".p2align 5")
    a.lab(f"{name}_loop")
    pre = ["s_and_b32 s33, s27, 3", f"s_mul_i32 s30, s33, {slot}", "s_cmp_eq_u32 s33, 3", f"s_cselect_b32 s32, {-3*slot}, s64"]
    upd = [f"v_add_u32 v{r}, s32, v{r}" for r in addr_regs]
    e(*k1_half(mf0, rd1, pre=pre, upd=upd))
    e(f"s_waitcnt vmcnt({2*nd}) lgkmcnt(0)")
    e("s_barrier")
    if name == "G1":
        e("s_cmp_eq_u32 s27, s92", "s_cbranch_scc1 G1_sig")
        a.lab("G1_sigd")
    tail = ["s_add_u32 s28, s28, 128"] + ([f"s_add_u32 s29, s29, {soffw_inc}"] if soffw_inc else []) + ["s_add_u32 s27, s27, 1", "s_cmp_lt_u32 s27, 6"]
    e(*k1_half(mf1, rd0, groups=dma_groups, tail=tail))
    e("s_waitcnt lgkmcnt(0)")
    e(f"s_cbranch_scc1 {name}_loop")
    pa, pd = WP
    for s in range(6, 10):
        d = -3*slot if (s & 3) == 3 else slot
        upd = [f"v_add_u32 v{r}, {d}, v{r}" for r in addr_regs] if s < 9 else []
        cnt = PAR[name]
        g0 = w2l.take(cnt[2*(s-8)+1]) if s >= 8 else []
        e(*k1_half(mf0, rd1, upd=upd, groups=g0))
        if s == 6: e(f"s_waitcnt vmcnt({2*nd}) lgkmcnt(0)")
        elif s == 7: e("s_waitcnt vmcnt(0) lgkmcnt(0)")
        elif s == 8: e("s_waitcnt lgkmcnt(0)")
        else: e("s_waitcnt lgkmcnt(0)")
        if s < 9 or True: e("s_barrier")
        g1 = []
        if s == 6:
            g1 = [["s_mov_b64 exec, 0x3fffffff", f"global_load_dword v{pd}, v{pa}, s[86:87] sc1", "s_mov_b64 exec, -1"]]
        if s == 7:
            e("s_mov_b64 exec, 0x3fffffff", f"v_cmp_ne_u32 vcc, {NONCE}, v{pd}", "s_mov_b64 exec, -1", "s_nop 2", "s_cbranch_vccnz " + f"{name}_wsp")
            a.lab(f"{name}_wok")
        if s >= 7: g1 = w2l.take(cnt[2*(s-7)])
        e(*k1_half(mf1, rd0 if s < 9 else [], groups=g1))
        if s < 9: e("s_waitcnt lgkmcnt(0)")
    def ool(b):
        ee = b.e
        b.lab(f"{name}_wsp")
        ee("s_mov_b32 s62, 0", "s_mov_b64 exec, 0x3fffffff")
        b.lab(f"{name}_wsp1")
        ee(f"global_load_dword v{pd}, v{pa}, s[86:87] sc1", "s_waitcnt vmcnt(0)", f"v_cmp_ne_u32 vcc, {NONCE}, v{pd}", "s_add_u32 s62, s62, 1", "s_nop 1",
           f"s_cbranch_vccz {name}_wsp2", f"s_cmp_lt_u32 s62, {SPIN}", f"s_cbranch_scc1 {name}_wsp1")
        b.lab(f"{name}_wsp2")
        ee("s_mov_b64 exec, -1", f"s_branch {name}_wok")
    return ool

def gen_f(a):
    e = a.e
    ools = []
    e("s_cmp_ge_u32 s2, 256", "s_cbranch_scc1 F_end")
    e("s_load_dwordx16 s[36:51], s[0:1], 0")
    e("s_load_dwordx2 s[86:87], s[0:1], 80")
    e("s_load_dwordx2 s[20:21], s[0:1], 64")
    if STAMP: e("v_mov_b32 v255, 0")
    stamp(a, 30, True); stamp(a, 0)
    e("v_lshrrev_b32 v1, 6, v0", "v_and_b32 v0, 63, v0")
    e("v_readfirstlane_b32 s24, v1")
    e("s_and_b32 s88, s2, 7", "s_lshr_b32 s89, s2, 3", "s_lshr_b32 s56, s88, 1", "s_lshl_b32 s56, s56, 2",
      "s_and_b32 s57, s89, 3", "s_add_u32 s25, s56, s57", "s_lshr_b32 s58, s89, 2", "s_and_b32 s59, s88, 1")
    e("s_lshl_b32 s56, s56, 1", "s_and_b32 s57, s89, 7", "s_add_u32 s90, s56, s57",
      "s_lshl_b32 s56, s59, 2", "s_lshr_b32 s57, s89, 3", "s_add_u32 s91, s56, s57")
    e("v_and_b32 v1, 15, v0", "v_lshrrev_b32 v2, 4, v0", "v_lshrrev_b32 v3, 3, v0", "v_and_b32 v4, 7, v0")
    e(f"s_mov_b32 s6, {X_SZ}", f"s_mov_b32 s7, {SRD3}", f"s_mov_b32 s11, {SRD3}", f"s_mov_b32 s15, {SRD3}", f"s_mov_b32 s19, {SRD3}",
      f"s_mov_b32 s22, {X_SZ}", f"s_mov_b32 s23, {SRD3}")
    e("s_lshl_b32 s60, s25, 2", "s_add_u32 s60, s60, s24", "s_mul_i32 s61, s60, 1280", "s_lshl_b32 s34, s24, 12")
    e("s_mul_i32 s94, s91, 245760", "s_mul_i32 s56, s24, 61440", "s_add_u32 s94, s94, s56")
    e(f"v_mov_b32 v27, {EPO}")
    e("s_sub_u32 s3, s2, 64")
    e("s_cmp_lt_u32 s58, 2", "s_cbranch_scc1 K1_dft")
    XV, WV, WA, XA0, XA1 = 8, 12, 16, 24, 25
    NV, W2R, PA, PD = 26, 254, 29, 30
    ACC, CS, SUM, SQ, ONES = 32, 96, 104, 112, 120
    A0, B0, A1, B1 = 124, 156, 164, 196
    T = 204
    PF, PL, PG, PW, PR = 164, 180, 204+16, 204+17, 204+18
    e("s_mul_i32 s26, s59, 6", "s_add_u32 s26, s26, s58", "s_sub_u32 s26, s26, 2")
    e("v_xor_b32 v5, v4, v2", "v_lshlrev_b32 v5, 4, v5")
    e("v_mov_b32 v7, 81920", "v_mul_u32_u24 v6, v7, v3")
    e("v_add3_u32 v6, v6, v5, s61")
    e(f"v_mov_b32 v{XV}, v6")
    e(f"v_xor_b32 v7, 64, v6")
    e(f"v_add_u32 v{XV+1}, {8*81920-1024}, v7")
    e(f"v_add_u32 v{XV+2}, {16*81920-2048}, v6")
    e(f"v_add_u32 v{XV+3}, {24*81920-3072}, v7")
    e("s_lshl_b32 s62, s24, 4", "v_add_u32 v5, s62, v2", "v_mul_u32_u24 v5, 3072, v5")
    e("v_lshlrev_b32 v6, 1, v2", "v_xor_b32 v6, v6, v1", "v_lshlrev_b32 v6, 4, v6")
    e("s_lshl_b32 s62, s26, 8", "v_add3_u32 v5, v5, v6, s62")
    e(f"v_mov_b32 v{WV}, v5", "v_xor_b32 v6, 128, v5")
    e(f"v_add_u32 v{WV+1}, {8*3072-1024}, v6")
    e(f"v_add_u32 v{WV+2}, {4*3072-2048}, v5")
    e(f"v_add_u32 v{WV+3}, {12*3072-3072}, v6")
    e("s_mul_i32 s56, s3, 2185", "s_lshr_b32 s56, s56, 16")
    e("s_mul_i32 s57, s56, 30", "s_sub_u32 s57, s3, s57")
    e("s_lshl_b32 s93, s56, 9", "s_lshl_b32 s62, s57, 4", "s_add_u32 s93, s93, s62", f"s_add_u32 s93, s93, {FL_W}")
    e("s_lshl_b32 s57, s57, 2", "s_add_u32 s57, s57, s24")
    e("s_mul_i32 s62, s57, 13108", "s_lshr_b32 s62, s62, 16")
    e("s_mul_i32 s63, s62, 5", "s_sub_u32 s63, s57, s63")
    e("s_mul_i32 s95, s62, 81920", "s_mul_i32 s57, s56, 320", "s_add_u32 s95, s95, s57", "s_lshl_b32 s57, s63, 6", "s_add_u32 s95, s95, s57")
    e("s_mul_i32 s56, s56, 491520", "s_mul_i32 s62, s62, 10240", "s_add_u32 s56, s56, s62")
    e("s_lshl_b32 s63, s63, 11")
    e(f"s_add_u32 s57, s63, {245760-5120}", "s_cmp_ge_u32 s63, 5120", "s_cselect_b32 s98, s57, s63", "s_add_u32 s98, s98, s56")
    e("s_add_u32 s63, s63, 1024", f"s_add_u32 s57, s63, {245760-5120}", "s_cmp_ge_u32 s63, 5120", "s_cselect_b32 s99, s57, s63", "s_add_u32 s99, s99, s56")
    e(f"v_lshrrev_b32 v5, 2, v0", "v_and_b32 v6, 3, v0", "v_mul_u32_u24 v7, 1280, v5", f"v_lshl_add_u32 v{PG}, v6, 4, v7")
    e("s_cmp_lt_u32 s3, 120", "s_cselect_b32 s92, 2, 99", "s_cmp_eq_u32 s24, 0", "s_cselect_b32 s92, s92, 99")
    e("s_waitcnt lgkmcnt(0)")
    stamp(a, 1)
    e("global_load_dword v26, v27, s[86:87] sc1")
    e("s_mov_b32 s4, s36", "s_mov_b32 s5, s37", "s_mov_b32 s8, s48", "s_mov_b32 s9, s49", f"s_mov_b32 s10, {W1_SZ}")
    e("s_mov_b32 s16, s50", "s_mov_b32 s17, s51", f"s_mov_b32 s18, {W2_SZ}")
    e("s_cmp_ge_u32 s3, 120", "s_cbranch_scc1 G1_nopre1")
    for n in range(4):
        e(f"buffer_load_dwordx4 {vr(PL+4*n,4)}, v{PG}, s[16:19], s95 offen")
        if n < 3: e("s_add_u32 s95, s95, 20480")
    a.lab("G1_nopre1")
    def g1_dma(m0x, m0w):
        g = []
        g.append([f"s_add_u32 m0, {m0x[0]}, {m0x[1]}", "s_nop 0", f"buffer_load_dwordx4 v{XV}, s[4:7], s28 offen lds"])
        for j in range(1, 4): g.append([f"buffer_load_dwordx4 v{XV+j}, s[4:7], s28 offen offset:{1024*j} lds"])
        g.append([f"s_add_u32 m0, {m0w[0]}, {m0w[1]}", "s_nop 0", f"buffer_load_dwordx4 v{WV}, s[8:11], s29 offen lds"])
        for j in range(1, 4): g.append([f"buffer_load_dwordx4 v{WV+j}, s[8:11], s29 offen offset:{1024*j} lds"])
        return g
    e("s_mov_b32 s28, 0", "s_mov_b32 s29, 0", "s_add_u32 s35, s34, 16384")
    def g1_st(st):
        gs = g1_dma(("s34", (st&3)*32768), ("s35", (st&3)*32768))
        gs[-1] = gs[-1] + ["s_add_u32 s28, s28, 128", "s_add_u32 s29, s29, 196608"]
        return gs
    dm = g1_st(0) + g1_st(1)
    S = A(); se = S.e
    se(f"v_lshrrev_b32 v5, 1, v1", "v_xor_b32 v5, v5, v2", "v_lshlrev_b32 v5, 4, v5")
    se(f"v_lshl_add_u32 v5, v1, 7, v5", f"v_add_u32 v{XA0}, s34, v5", f"v_xor_b32 v{XA1}, 64, v{XA0}")
    se("v_lshrrev_b32 v5, 2, v1", "v_and_b32 v6, 1, v2", "v_lshl_add_u32 v5, v6, 2, v5")
    se("v_lshrrev_b32 v6, 1, v2", "v_lshl_add_u32 v6, v6, 4, v5")
    se("v_lshlrev_b32 v6, 8, v6", "v_and_b32 v7, 3, v1", "v_lshl_add_u32 v6, v7, 3, v6", "v_add_u32 v6, 16384, v6")
    for t in range(8):
        se("s_lshl_b32 s62, s24, 1", f"s_add_u32 s62, s62, {t}", "s_and_b32 s62, s62, 7",
           "v_xor_b32 v7, s62, v5", f"v_lshl_add_u32 v{WA+t}, v7, 5, v6")
    lane_masks(S, T)
    for r in range(ONES, ONES+4): se(f"v_mov_b32 v{r}, 0x3f803f80")
    common_setup(S, W2R, PA, PW, PR)
    L = S.L; k = (len(L) + len(dm) - 5) // (len(dm) - 4)
    pos = 0
    for gi, g in enumerate(dm):
        e(*g)
        if gi >= 4:
            e(*L[pos:pos+k]); pos += k
    e(*L[pos:])
    stamp(a, 2)
    e("s_waitcnt vmcnt(16)")
    nonce_calc(a, 26)
    e("s_mov_b32 s16, s86", "s_mov_b32 s17, s87", f"s_add_u32 s16, s16, {W2T_OFF}", "s_addc_u32 s17, s17, 0", f"s_mov_b32 s18, {W2T_SZ}")
    e("s_cmp_ge_u32 s3, 120", "s_cbranch_scc1 G1_nopre2")
    for n in range(4): e(f"ds_write_b128 v{PW}, {vr(PL+4*n,4)} offset:{16*80*n}")
    for k2 in range(2):
        for nt in range(2):
            for hf in range(2):
                e(f"ds_read_b64_tr_b16 {vr(PF+8*k2+4*nt+2*hf,2)}, v{PR} offset:{k2*32*80+hf*16*80+nt*32}")
    e("v_lshlrev_b32 v5, 4, v0", "s_waitcnt lgkmcnt(0)")
    for k2 in range(2):
        for nt in range(2):
            e(f"buffer_store_dwordx4 {vr(PF+8*k2+4*nt,4)}, v5, s[16:19], s{98+nt} offen offset:{0} sc1" if k2 == 0 else
              f"buffer_store_dwordx4 {vr(PF+8*k2+4*nt,4)}, v5, s[16:19], s{98+nt} offen offset:{0} sc1")
        if k2 == 0: e("s_add_u32 s98, s98, 5120", "s_add_u32 s99, s99, 5120")
    e("s_waitcnt vmcnt(12)", "s_branch G1_pre_done")
    a.lab("G1_nopre2")
    e("s_waitcnt vmcnt(8)")
    a.lab("G1_pre_done")
    def g1_mf(Ab, Bb, mfma=mfma):
        m = []
        for t in range(8):
            for mt in range(2): m.append(mfma(ACC + (t*2+mt)*4, Ab + 4*t, Bb + 4*mt))
            if t < 2: m.append(mfma(CS + 4*t, Ab + 4*t, ONES))
            if t in (2, 3): m.append(mfma(SUM + 4*(t-2), ONES, Bb + 4*(t-2)))
            if t in (4, 5): m.append(mfma(SQ + 4*(t-4), Bb + 4*(t-4), Bb + 4*(t-4)))
        return m
    def g1_rd(Ab, Bb, xa, kk):
        r = []
        for mt in range(2): r.append(f"ds_read_b128 {vr(Bb+4*mt,4)}, v{xa} offset:{2048*mt}")
        for t in range(8):
            for hf in range(2): r.append(f"ds_read_b64_tr_b16 {vr(Ab+4*t+2*hf,2)}, v{WA+t} offset:{kk*8192+hf*2048}")
        return r
    e("s_barrier")
    stamp(a, 3)
    e(*g1_rd(A0, B0, XA0, 0))
    e("s_waitcnt lgkmcnt(0)")
    w2l = W2L(W2R)
    ool = k1_main(a, "G1", 32768, g1_mf(A0, B0), g1_mf(A1, B1), g1_rd(A1, B1, XA1, 1), g1_rd(A0, B0, XA0, 0),
            [WA+t for t in range(8)] + [XA0, XA1], g1_dma(("s30", "s34"), ("s30", "s35")), 8, 196608, w2l, (PA, PD), g1_mf(A0, B0, mfma0), g1_st)
    ools.append(ool)
    def sig(b):
        b.lab("G1_sig")
        b.e("v_mov_b32 v5, s93", f"v_mov_b32 v6, {NONCE}", "s_mov_b64 exec, 1", "global_store_dword v5, v6, s[86:87] sc1", "s_mov_b64 exec, -1", "s_branch G1_sigd")
    ools.append(sig)
    stamp(a, 4)
    E = A(); ee = E.e
    ee("s_nop 7", "s_nop 7")
    ee("s_lshl_b32 s62, s24, 7", "s_add_u32 s62, s62, 131072")
    ee(f"v_lshl_add_u32 v5, v2, 4, s62")
    ee(f"ds_write_b128 v5, {vr(CS,4)}", f"ds_write_b128 v5, {vr(CS+4,4)} offset:64")
    MB, RS = [T+12, T+13], [T+14, T+15]
    stats_code(E, [SUM, SUM+4], [SQ, SQ+4], T, [(MB[0], RS[0]), (MB[1], RS[1])])
    for mt in range(2): ee(f"v_mul_f32 v{RS[mt]}, {fhex(-LOG2E)}, v{RS[mt]}")
    ee("s_waitcnt lgkmcnt(0)", "s_barrier")
    stamp(E, 11)
    CSR = A0
    for t in range(8):
        ee("s_lshl_b32 s62, s24, 1", f"s_add_u32 s62, s62, {t}", "s_and_b32 s62, s62, 7", "s_lshl_b32 s62, s62, 6", "s_add_u32 s62, s62, 131072",
           f"v_lshl_add_u32 v5, v2, 4, s62", f"ds_read_b128 {vr(CSR+4*t,4)}, v5")
    ee("s_mov_b32 s12, s86", "s_mov_b32 s13, s87", f"s_mov_b32 s14, {H_SZ}")
    ee("s_and_b32 s62, s60, 31", "s_mul_i32 s62, s62, 48", "s_lshl_b32 s63, s26, 2", "s_add_u32 s62, s62, s63", "s_lshl_b32 s62, s62, 2",
       "s_lshr_b32 s63, s25, 3", "s_lshl_b32 s63, s63, 1", "s_add_u32 s62, s62, s63", "s_lshl_b32 s62, s62, 10")
    ee("v_lshlrev_b32 v6, 4, v0")
    ee("s_waitcnt lgkmcnt(0)")
    TT = A1
    stamp(E, 12)
    for u in range(4):
        ee(f"s_add_u32 s63, s24, {u}", "s_and_b32 s63, s63, 3", "s_lshl_b32 s63, s63, 12", "s_add_u32 s63, s63, s62")
        for mt in range(2):
            tb = TT + ((u*2+mt) & 1) * 20
            z = tb; ex = tb + 8; pk = tb + 16
            vals = [(ACC + ((2*u+h)*2+mt)*4 + r, CSR + (2*u+h)*4 + r) for h in range(2) for r in range(4)]
            for k, (ac, cs) in enumerate(vals): ee(f"v_fma_f32 v{z+k}, -v{MB[mt]}, v{cs}, v{ac}")
            for k in range(0, 8, 2): ee(f"v_pk_mul_f32 {vr(z+k,2)}, {vr(z+k,2)}, {vr(RS[mt]&~1,2)} op_sel:[0,{RS[mt]&1}] op_sel_hi:[1,{RS[mt]&1}]")
            for k in range(8): ee(f"v_exp_f32 v{ex+k}, v{z+k}")
            for k in range(0, 8, 2): ee(f"v_pk_add_f32 {vr(ex+k,2)}, {vr(ex+k,2)}, 1.0 op_sel_hi:[1,0]")
            for k in range(8): ee(f"v_rcp_f32 v{ex+k}, v{ex+k}")
            for k in range(0, 8, 2): ee(f"v_pk_mul_f32 {vr(z+k,2)}, {vr(z+k,2)}, {vr(ex+k,2)}")
            for k in range(4): ee(f"v_cvt_pk_bf16_f32 v{pk+k}, v{z+2*k}, v{z+2*k+1}")
            ee(f"buffer_store_dwordx4 {vr(pk,4)}, v6, s[12:15], s63 offen offset:{1024*mt} sc1")
    out, left = merge_safe(E.L, w2l.take(PAR['G1'][5]), PAR['G1'][6], start=4)
    e(*out)
    for g in left: e(*g)
    stamp(a, 5)
    rest = w2l.take(60)
    e("s_mul_i32 s56, s26, 22", "s_lshr_b32 s56, s56, 6", "s_mul_i32 s57, s56, 3", "s_sub_u32 s57, s26, s57", "s_lshl_b32 s57, s57, 1",
      "s_lshr_b32 s62, s25, 3", "s_add_u32 s57, s57, s62", "s_lshl_b32 s57, s57, 4", "s_lshl_b32 s56, s56, 7", "s_add_u32 s57, s57, s56",
      "s_and_b32 s56, s25, 7", "s_lshl_b32 s56, s56, 9", "s_add_u32 s57, s57, s56", f"s_add_u32 s93, s57, {FL_H}")
    publish(a, "G1", rest, PAR['G1'][7])
    e("s_branch K2_start")
    a.lab("K1_dft")
    XV, DV, XA0, XA1, BA0, BA1 = 8, 12, 17, 18, 19, 20
    NV, W2R, PA, PD = 26, 28, 29, 30
    ACC, SUM, SQ, ONES = 32-8, 104, 112, 120
    ACC = 24
    W2R, PA, PD = 254, 253, 252
    A0, B0, A1, B1 = 124, 132, 172, 180
    WC = 220
    e("s_lshl_b32 s26, s59, 1", "s_add_u32 s26, s26, s58")
    e("v_xor_b32 v5, v4, v2", "v_lshlrev_b32 v5, 4, v5")
    e("v_lshrrev_b32 v6, 2, v3", "v_and_b32 v7, 3, v3", "v_lshl_add_u32 v6, v6, 3, v7")
    e("v_mov_b32 v7, 81920", "v_mul_u32_u24 v6, v7, v6")
    e("v_add3_u32 v6, v6, v5, s61")
    e(f"v_mov_b32 v{XV}, v6", "v_xor_b32 v7, 64, v6")
    e(f"v_add_u32 v{XV+1}, {16*81920-1024}, v7")
    e(f"v_add_u32 v{XV+2}, {4*81920-2048}, v6")
    e(f"v_add_u32 v{XV+3}, {20*81920-3072}, v7")
    e("s_and_b32 s62, s24, 1", "s_lshl_b32 s63, s62, 2", "v_add_u32 v5, s63, v2", "v_xor_b32 v5, v5, v4", "v_lshlrev_b32 v5, 4, v5")
    e("s_mul_i32 s63, s26, 80", "s_lshl_b32 s62, s62, 3", "s_add_u32 s63, s63, s62", "v_add_u32 v6, s63, v3")
    e("v_mov_b32 v7, 1280", "v_mad_u32_u24 v21, v6, v7, v5")
    for j in range(1, 5): e(f"v_add_u32 v{DV+j}, {16*1280*j - (1024*j if j < 4 else 0)}, v21")
    e("v_cmp_eq_u32 vcc, 0, v6", f"v_add_u32 v22, {320*1280}, v21", "s_nop 0", f"v_cndmask_b32 v{DV}, v21, v22, vcc")
    e("v_lshlrev_b32 v5, 18, v1", "v_lshl_add_u32 v5, v2, 4, v5", f"v_add_u32 v6, {16*262144}, v5")
    e("s_mov_b32 s28, 0", "s_mul_i32 s35, s24, 5120", "s_add_u32 s35, s35, 16384")
    e("s_waitcnt lgkmcnt(0)")
    stamp(a, 1)
    e("global_load_dword v23, v27, s[86:87] sc1")
    e("s_mov_b32 s4, s36", "s_mov_b32 s5, s37")
    e("s_cmp_ge_u32 s24, 2", "s_cselect_b32 s8, s44, s42", "s_cselect_b32 s9, s45, s43", f"s_mov_b32 s10, {WD_SZ}")
    def dft_dma(base0, base1):
        g = []
        g.append([f"s_add_u32 m0, {base0[0]}, {base0[1]}", "s_nop 0", f"buffer_load_dwordx4 v{XV}, s[4:7], s28 offen lds"])
        for j in range(1, 4): g.append([f"buffer_load_dwordx4 v{XV+j}, s[4:7], s28 offen offset:{1024*j} lds"])
        g.append([f"s_add_u32 m0, {base1[0]}, {base1[1]}", "s_nop 0", f"buffer_load_dwordx4 v{DV}, s[8:11], s28 offen lds"])
        for j in range(1, 4): g.append([f"buffer_load_dwordx4 v{DV+j}, s[8:11], s28 offen offset:{1024*j} lds"])
        g.append(["s_add_u32 m0, m0, 4096", "s_nop 0", f"buffer_load_dwordx4 v{DV+4}, s[8:11], s28 offen lds"])
        return g
    def dft_st(st):
        gs = dft_dma(("s34", (st&3)*36864), ("s35", (st&3)*36864))
        gs[-1] = gs[-1] + ["s_add_u32 s28, s28, 128"]
        return gs
    dm = dft_st(0)
    dm.append([f"global_load_dwordx4 {vr(WC,4)}, v5, s[38:39]", f"global_load_dwordx4 {vr(WC+4,4)}, v6, s[38:39]",
               f"global_load_dwordx4 {vr(WC+8,4)}, v5, s[40:41]", f"global_load_dwordx4 {vr(WC+12,4)}, v6, s[40:41]"])
    dm += dft_st(1)
    T = 236
    S = A(); se = S.e
    se(f"v_lshrrev_b32 v7, 1, v1", "v_xor_b32 v7, v7, v2", "v_lshlrev_b32 v7, 4, v7")
    se(f"v_lshl_add_u32 v21, v1, 7, v7", f"v_add_u32 v{XA0}, s34, v21", f"v_xor_b32 v{XA1}, 64, v{XA0}")
    se("v_lshrrev_b32 v21, 3, v1", "v_mul_u32_u24 v21, 5120, v21", "v_and_b32 v22, 7, v1", "v_lshl_add_u32 v21, v22, 7, v21")
    se(f"v_add_u32 v21, v21, v7", f"v_add_u32 v{BA0}, 16384, v21", f"v_xor_b32 v{BA1}, 64, v{BA0}")
    for r in range(ONES, ONES+4): se(f"v_mov_b32 v{r}, 0x3f803f80")
    lane_masks(S, T)
    common_setup(S, W2R, PA, None, None)
    L = S.L; k = (len(L) + len(dm) - 11) // (len(dm) - 10)
    pos = 0
    for gi, g in enumerate(dm):
        e(*g)
        if gi >= 10:
            e(*L[pos:pos+k]); pos += k
    e(*L[pos:])
    stamp(a, 2)
    e("s_waitcnt vmcnt(13)")
    nonce_calc(a, 23)
    e("s_mov_b32 s16, s86", "s_mov_b32 s17, s87", f"s_add_u32 s16, s16, {W2T_OFF}", "s_addc_u32 s17, s17, 0", f"s_mov_b32 s18, {W2T_SZ}")
    def dacc(p, part, mt): return ACC + ((p*2+part)*2+mt)*4
    def dft_mf(Ab, Bb, mfma=mfma):
        m = []
        for p in range(5):
            for part in range(2):
                for mt in range(2): m.append(mfma(dacc(p, part, mt), Ab + 4*mt, Bb + (part*5+p)*4))
            if p < 2: m.append(mfma(SUM + 4*p, ONES, Ab + 4*p))
            if p in (2, 3): m.append(mfma(SQ + 4*(p-2), Ab + 4*(p-2), Ab + 4*(p-2)))
        return m
    def dft_rd(Ab, Bb, xa, ba):
        r = []
        for mt in range(2): r.append(f"ds_read_b128 {vr(Ab+4*mt,4)}, v{xa} offset:{2048*mt}")
        for p in range(5):
            for part in range(2): r.append(f"ds_read_b128 {vr(Bb+(part*5+p)*4,4)}, v{ba} offset:{part*10240+p*1024}")
        return r
    e("s_barrier")
    stamp(a, 3)
    e(*dft_rd(A0, B0, XA0, BA0))
    e("s_waitcnt lgkmcnt(0)")
    w2l = W2L(W2R)
    ool = k1_main(a, "DF", 36864, dft_mf(A0, B0), dft_mf(A1, B1), dft_rd(A1, B1, XA1, BA1), dft_rd(A0, B0, XA0, BA0),
            [XA0, XA1, BA0, BA1], dft_dma(("s30", "s34"), ("s30", "s35")), 9, 0, w2l, (PA, PD), dft_mf(A0, B0, mfma0), dft_st)
    ools.append(ool)
    stamp(a, 4)
    E = A(); ee = E.e
    ee("s_nop 7", "s_nop 7")
    MB, RS = [T+12, T+13], [T+14, T+15]
    stats_code(E, [SUM, SUM+4], [SQ, SQ+4], T, [(MB[0], RS[0]), (MB[1], RS[1])])
    RR = A0
    ee("v_lshlrev_b32 v5, 4, v2")
    for mt in range(2):
        for r in range(4): ee(f"v_add_u32 v6, {4*r}, v5", f"ds_bpermute_b32 v{RR+mt*4+r}, v6, v{RS[mt]}")
    for k in range(8): ee(f"v_xor_b32 v{WC+16+k}, 0x80008000, v{WC+8+k}")
    ee("s_waitcnt lgkmcnt(0)")
    stamp(E, 11)
    PK = B0
    for p in range(5):
        for part in range(2):
            for mt in range(2):
                ac = dacc(p, part, mt)
                for r in range(0, 4, 2): ee(f"v_pk_mul_f32 {vr(ac+r,2)}, {vr(ac+r,2)}, {vr(RR+mt*4+r,2)}")
            for mt in range(2):
                ac = dacc(p, part, mt)
                for h in range(2): ee(f"v_cvt_pk_bf16_f32 v{PK+8*p+4*part+2*mt+h}, v{ac+2*h}, v{ac+2*h+1}")
    ee("s_nop 1")
    def ud(p, nt, c): return ACC + p*16 + nt*8 + 4*c
    for p in range(5):
        aa, bb = PK+8*p, PK+8*p+4
        for nt in range(2):
            ee(mfma0(ud(p, nt, 0), aa, WC + 4*nt)); ee(mfma0(ud(p, nt, 1), aa, WC + 8 + 4*nt))
        for nt in range(2):
            ee(mfma(ud(p, nt, 0), bb, WC + 16 + 4*nt)); ee(mfma(ud(p, nt, 1), bb, WC + 4*nt))
    ee(f"s_mov_b32 s14, {U_SZ}", "s_mov_b32 s12, s86", "s_mov_b32 s13, s87")
    ee(f"s_add_u32 s12, s12, {U_OFF}", "s_addc_u32 s13, s13, 0")
    ee("s_mul_i32 s62, s60, 80", "s_mul_i32 s63, s26, 20", "s_add_u32 s62, s62, s63", "s_lshl_b32 s62, s62, 4")
    ee("v_mov_b32 v7, 81920", "v_mul_u32_u24 v5, v7, v1", "v_lshl_add_u32 v5, v2, 4, v5", f"v_add_u32 v6, {16*81920}, v5")
    ee("s_nop 7")
    stamp(E, 12)
    k = 0
    for p in range(5):
        for nt in range(2):
            tb = A1 + (k % 4) * 4; k += 1
            re, im = ud(p, nt, 0), ud(p, nt, 1)
            ee(f"v_cvt_pk_bf16_f32 v{tb}, v{re}, v{re+1}", f"v_cvt_pk_bf16_f32 v{tb+1}, v{re+2}, v{re+3}",
               f"v_cvt_pk_bf16_f32 v{tb+2}, v{im}, v{im+1}", f"v_cvt_pk_bf16_f32 v{tb+3}, v{im+2}, v{im+3}")
            ee(f"buffer_store_dwordx4 {vr(tb,4)}, v{5+nt}, s[12:15], s62 offen offset:{64*p} sc1")
    out, left = merge_safe(E.L, w2l.take(PAR['DF'][5]), PAR['DF'][6], start=4)
    e(*out)
    for g in left: e(*g)
    stamp(a, 5)
    rest = w2l.take(60)
    e("s_lshl_b32 s57, s26, 4", "s_add_u32 s57, s57, s25", "s_lshl_b32 s57, s57, 4", f"s_add_u32 s93, s57, {FL_U}")
    publish(a, "DF", rest, PAR['DF'][7])
    a.lab("K2_start")
    from gen2k2 import gen_k2f
    gen_k2f(a, ools, stamp, stamp_out)
    a.lab("F_end")
    e("s_endpgm")
    for o in ools: o(a)

def merge_safe(main, fill, every, start=0):
    out = []; fi = 0; cnt = 0
    for i, m in enumerate(main):
        out.append(m)
        if i >= start:
            cnt += 1
            nxt = main[i+1] if i+1 < len(main) else ""
            if cnt >= every and fi < len(fill) and not nxt.startswith(("s_addc", "s_cselect", "s_cbranch", "v_cndmask")):
                out += fill[fi]; fi += 1; cnt = 0
    return out, fill[fi:]

def nonce_calc(a, v):
    a.e("s_nop 0", f"v_readfirstlane_b32 {NONCE}, v{v}", "s_nop 3", f"s_mul_i32 {NONCE}, {NONCE}, 0x9E3779B1", f"s_add_u32 {NONCE}, {NONCE}, 0x7F4A7C15")

def common_setup(S, W2R, PA, PW, PR):
    se = S.e
    se(f"v_lshlrev_b32 v{W2R}, 4, v0")
    se("s_lshr_b32 s62, s91, 1", "s_lshl_b32 s62, s62, 9", f"s_add_u32 s62, s62, {FL_W}", f"v_lshl_add_u32 v{PA}, v0, 4, s62")
    if PW is not None:
        se("s_mul_i32 s62, s24, 5120", "s_add_u32 s62, s62, 131072")
        se("v_lshrrev_b32 v7, 2, v0", "v_mul_u32_u24 v7, 80, v7", "v_and_b32 v6, 3, v0", "v_lshl_add_u32 v7, v6, 4, v7", f"v_add_u32 v{PW}, s62, v7")
        se("v_lshrrev_b32 v7, 2, v1", "v_lshl_add_u32 v7, v2, 2, v7", "v_mul_u32_u24 v7, 80, v7", "v_lshl_add_u32 v7, v6, 3, v7", f"v_add_u32 v{PR}, s62, v7")

def publish(a, name, rest, npre):
    e = a.e
    from gen2k2 import k2_setup
    nrest = min(npre, len(rest))
    for g in rest[:nrest]: e(*g)
    k2_setup(a)
    import gen2k2
    stamp(a, 13)
    e(f"s_waitcnt vmcnt({nrest + gen2k2.K2_SETUP_VM})")
    stamp(a, 14)
    e("s_barrier")
    stamp(a, 6)
    e("s_cmp_lg_u32 s24, 0", f"s_cbranch_scc1 {name}_pubd")
    e("v_mov_b32 v5, s93", f"v_mov_b32 v6, {NONCE}", "s_mov_b64 exec, 1", "global_store_dword v5, v6, s[86:87] sc1", "s_mov_b64 exec, -1")
    a.lab(f"{name}_pubd")
    for g in rest[nrest:]: e(*g)

def build():
    lab = "f_kernel" if 'list' in OPT else KN + "_kernel"
    out = HEADER
    if 'list' in OPT: out += f"; @launch kernel={lab} grid=(256,1,1) block=(256,1,1) lds=160768\n"
    else: out += f"; @launch grid=(256,1,1) block=(256,1,1) lds=160768\n"
    out += '.amdgcn_target "amdgcn-amd-amdhsa--gfx950"\n.text\n'
    a = A(); gen_f(a)
    out += f".globl {lab}\n.p2align 8\n.type {lab},@function\n{lab}:\n" + a.text()
    out += '.section .rodata,"a"\n.p2align 6\n' + gen.kernel_desc(lab, 256, 256, 512)
    return out

if __name__ == "__main__":
    out = sys.argv[1]
    if len(sys.argv) > 2:
        for o in sys.argv[2].split(','):
            if o == 'st': STAMP = True
            elif o.startswith('US='):
                import gen2k2; gen2k2.USTEP = int(o[3:])
            elif o.startswith('G1=') or o.startswith('DF='): PAR[o[:2]] = [int(x) for x in o[3:].split('.')]
            else: OPT.add(o)
    import gen2k2
    gen2k2.OPT = OPT; gen2k2.STAMP = STAMP
    open(out, "w").write(build())
```

```python
from asmlib import *
from gen import LN2, H_SZ, U_OFF, U_SZ, SRD3
STAMP = False
OPT = set()
FL = 0xB00000; FL_H = FL; FL_U = FL + 4096; EPO = FL + 16384
SPIN = 200000
NONCE = "s65"
K2_SETUP_VM = 8
USTEP = 6
XSTEP = 8
HV, UA, XO, PH, PU = 8, 12, 13, 14, 15
Y, ACC, HB, US6 = 16, 40, 120, 248
PDH, PDU = 252, 253
UB, YB, RB = 102400, 131072, 0
def ust(n): return Y + 4*n if n < 6 else US6

def k2_setup(a):
    e = a.e
    e("s_sub_u32 s56, 32, s90", "s_and_b32 s56, s56, 31", "s_mul_i32 s57, s91, 20", "s_sub_u32 s58, 140, s57",
      "s_cmp_ge_u32 s91, 4", "s_cselect_b32 s27, 1, 0", "s_cselect_b32 s28, s56, s90", "s_cselect_b32 s29, s58, s57")
    e("s_and_b32 s56, s24, 1", "s_lshl_b32 s56, s56, 10", "s_lshr_b32 s57, s24, 1", "s_lshl_b32 s57, s57, 5", "s_add_u32 s30, s56, s57", "s_add_u32 s30, s30, s90")
    e("v_lshlrev_b32 v5, 6, v1", "v_add_u32 v5, s30, v5", "v_lshlrev_b32 v5, 12, v5",
      "v_lshrrev_b32 v6, 1, v2", "v_lshl_add_u32 v5, v6, 4, v5")
    e("v_and_b32 v6, 1, v2", "v_cmp_eq_u32 vcc, 0, v6", "s_nop 1", "s_mov_b64 exec, vcc")
    for k in range(4): e(f"global_load_dwordx4 {ar(240+4*k,4)}, v5, s[38:39] offset:{32*k}")
    e("s_not_b64 exec, exec")
    for k in range(4): e(f"global_load_dwordx4 {ar(240+4*k,4)}, v5, s[40:41] offset:{32*k}")
    e("s_mov_b64 exec, -1")
    e("s_mov_b32 s4, s86", "s_mov_b32 s5, s87", f"s_mov_b32 s6, {H_SZ}")
    e("s_mov_b32 s8, s86", "s_mov_b32 s9, s87", f"s_add_u32 s8, s8, {U_OFF}", "s_addc_u32 s9, s9, 0", f"s_mov_b32 s10, {U_SZ}")
    e("v_mov_b32 v7, 81920", f"v_mul_u32_u24 v{XO}, v7, v1", f"v_lshl_add_u32 v{XO}, v2, 3, v{XO}")
    e("s_mul_i32 s31, s30, 1280", "s_mul_i32 s56, s91, 160", "s_add_u32 s31, s31, s56")
    e("s_mul_i32 s32, s28, 81920")
    e("s_mul_i32 s56, s24, 448", "v_add_u32 v5, s56, v0")
    for n in range(7):
        e(f"v_add_u32 v6, {64*n}, v5", "v_mul_u32_u24 v7, 2341, v6", "v_lshrrev_b32 v7, 16, v7",
          "v_mul_u32_u24 v3, 28, v7", "v_sub_u32 v6, v6, v3", "v_add_u32 v6, s29, v6",
          "v_subrev_u32 v3, 80, v6", "v_cmp_le_u32 vcc, 80, v6", "v_lshlrev_b32 v4, 8, v7", "v_cndmask_b32 v6, v6, v3, vcc",
          "v_lshl_add_u32 v4, v7, 10, v4", f"v_lshl_add_u32 v{ust(n)}, v6, 4, v4")
    for mu in range(4):
        e(f"s_add_u32 s56, s24, {mu}", "s_and_b32 s56, s56, 3", "s_lshl_b32 s56, s56, 10", f"v_lshl_add_u32 v{HV+mu}, v0, 4, s56")
    e("s_mul_i32 s34, s90, 48", "s_mul_i32 s56, s24, 12", "s_add_u32 s34, s34, s56", "s_lshl_b32 s34, s34, 12")
    e("v_lshrrev_b32 v5, 2, v1", "v_lshrrev_b32 v6, 1, v2", "v_lshl_add_u32 v5, v6, 3, v5", "v_mul_u32_u24 v5, 448, v5",
      "v_and_b32 v6, 3, v1", "v_lshl_add_u32 v5, v6, 4, v5", "v_and_b32 v6, 1, v2", "v_lshl_add_u32 v5, v6, 3, v5", f"v_add_u32 v{UA}, {UB}, v5")
    e("s_lshr_b32 s56, s90, 2", "s_lshl_b32 s56, s56, 9", "s_lshl_b32 s57, s24, 7", "s_add_u32 s56, s56, s57", f"s_add_u32 s56, s56, {FL_H}",
      f"v_lshl_add_u32 v{PH}, v0, 4, s56", f"s_mov_b32 s56, {FL_U}", f"v_lshl_add_u32 v{PU}, v0, 4, s56")
    e("s_cmp_eq_u32 s27, 0", "s_cselect_b32 s33, 0x80008000, 0")
    e("s_or_b32 s92, s2, s24")

class VQ:
    def __init__(s): s.q = []
    def add(s, tag): s.q.append(tag)
    def wait(s, tag):
        idx = max(i for i, t in enumerate(s.q) if t == tag)
        return f"s_waitcnt vmcnt({len(s.q) - 1 - idx})"

def gen_k2f(a, ools, stamp, stamp_out):
    e = a.e
    e("s_mov_b32 s62, 0", "s_mov_b64 exec, 0x3f")
    a.lab("K2_hp")
    e(f"global_load_dword v{PDH}, v{PH}, s[86:87] sc1", "s_waitcnt vmcnt(0)", f"v_cmp_ne_u32 vcc, {NONCE}, v{PDH}", "s_add_u32 s62, s62, 1", "s_nop 1",
      "s_cbranch_vccz K2_hpd", f"s_cmp_lt_u32 s62, {SPIN}", "s_cbranch_scc1 K2_hp")
    a.lab("K2_hpd")
    e("s_mov_b64 exec, -1")
    stamp(a, 7)
    q = VQ()
    def hload(k):
        g = []
        hb = HB + (k % 8)*16
        for mu in range(4):
            g.append([f"buffer_load_dwordx4 {vr(hb+4*mu,4)}, v{HV+mu}, s[4:7], s34 offen sc1"]); q.add(f"h{k}")
        g[-1].append("s_add_u32 s34, s34, 4096")
        return g
    NPRE = 3
    for k in range(NPRE):
        for g in hload(k): e(*g)
    stamp(a, 8)
    def smf(kk):
        hb = HB + (kk % 8)*16; m = []
        for nt in range(5):
            for mu in range(4):
                d = ACC + (mu*5+nt)*4
                m.append((mfma0 if kk == 0 else mfma)(d, 20*kk+4*nt, hb+4*mu, aa=True))
        return m
    UAb = HB + 64
    def urd(k):
        r = []
        for t in range(6):
            for hf in range(2):
                r.append(f"ds_read_b64_tr_b16 {vr(UAb+(k&1)*24+4*t+2*hf,2)}, v{UA} offset:{k*7168+hf*1792+t*64}")
        return r
    def ymf(k):
        m = []
        for t in range(6):
            c = "0" if k == 0 else vr(Y+4*t, 4)
            m.append(f"v_mfma_f32_16x16x32_bf16 {vr(Y+4*t,4)}, {vr(UAb+(k&1)*24+4*t,4)}, {ar(240+4*k,4)}, {c}")
        return m
    XR = HB + 7*16
    PW = [HV+1, HV+2, HV+3]; PRD = PH
    for kk in range(12):
        e(q.wait(f"h{kk}"))
        fill = []
        sched = {0: [3, 4], 1: [5, 6], 2: [7, 8], 3: [9, 10], 4: [11]}
        if kk == USTEP - 2:
            fill.append([f"global_load_dword v{PDU}, v{PU}, s[86:87] sc1"]); q.add("uf")
        for hk in sched.get(kk, []): fill += hload(hk)
        if kk == USTEP:
            e(q.wait("uf"))
            e(f"v_cmp_ne_u32 vcc, {NONCE}, v{PDU}", "s_nop 2", "s_cbranch_vccnz K2_usp")
            a.lab("K2_uok")
            for n in range(7):
                fill.append([f"buffer_load_dwordx4 {vr(ust(n),4)}, v{ust(n)}, s[8:11], s32 offen sc1"]); q.add("u")
        if kk == XSTEP:
            for nt in range(5):
                fill.append([f"buffer_load_dwordx2 {vr(XR+2*nt,2)}, v{XO}, s[12:15], s31 offen offset:{32*nt}"]); q.add("x")
        if kk == 9:
            fill.append(["v_mov_b32 v7, 336", "v_mul_u32_u24 v5, v7, v1"]); fill.append(["v_lshl_add_u32 v5, v2, 4, v5"])
            for mu in range(1, 4):
                fill.append([f"s_add_u32 s56, s24, {mu}", "s_and_b32 s56, s56, 3", "s_mul_i32 s56, s56, 3", f"s_add_u32 s56, s56, {mu-1}", f"s_mul_i32 s56, s56, {16*336}",
                  f"v_add_u32 v{PW[mu-1]}, s56, v5"])
            fill.append([f"s_mul_i32 s56, s24, {3*16*336}", f"v_add_u32 v{PRD}, s56, v5"])
            fill.append(["s_mul_i32 s57, s24, 7168", f"s_add_u32 s57, s57, {UB}", "v_lshl_add_u32 v3, v0, 4, s57"])
        if kk == 10:
            e("s_cmp_lg_u32 s92, 0", "s_cbranch_scc1 K2_noep")
            e(f"s_mov_b32 s56, {FL_H}", "v_lshl_add_u32 v5, v0, 4, s56")
            for n in range(4): e(f"global_load_dword v{242+n}, v5, s[86:87] offset:{1024*n} sc1")
            e(f"global_load_dword v246, v{PU}, s[86:87] sc1")
            a.lab("K2_noep")
        if kk < 11:
            e(*interleave(smf(kk), fill, start=1, per=1))
        else:
            hb = HB + (kk % 8)*16
            M = lambda mu, nt: mfma(ACC + (mu*5+nt)*4, 20*kk+4*nt, hb+4*mu, aa=True)
            Wr = lambda mu, nt: f"ds_write_b128 v{PW[mu-1]}, {vr(ACC+(mu*5+nt)*4,4)} offset:{RB+64*nt}"
            for nt in range(5): e(M(1, nt))
            for nt in range(5): e(M(2, nt))
            for nt in range(5): e(M(3, nt), Wr(1, nt))
            for nt in range(5): e(M(0, nt), Wr(2, nt))
            for nt in range(5): e(Wr(3, nt))
        if kk == XSTEP - 1:
            e("s_mov_b32 s12, s36", "s_mov_b32 s13, s37", f"s_mov_b32 s14, {2048*1280}")
        if kk == 8: stamp(a, 9)
    def usp(b):
        b.lab("K2_usp")
        b.e("s_mov_b32 s62, 0")
        b.lab("K2_usp1")
        b.e(f"global_load_dword v{PDU}, v{PU}, s[86:87] sc1", "s_waitcnt vmcnt(0)", f"v_cmp_ne_u32 vcc, {NONCE}, v{PDU}", "s_add_u32 s62, s62, 1", "s_nop 1",
            "s_cbranch_vccz K2_uok", f"s_cmp_lt_u32 s62, {SPIN}", "s_cbranch_scc1 K2_usp1", "s_branch K2_uok")
    ools.append(usp)
    e("s_waitcnt lgkmcnt(0)", "s_barrier")
    P = HB
    for i in range(3):
        for nt in range(5): e(f"ds_read_b128 {vr(P+(i*5+nt)*4,4)}, v{PRD} offset:{RB+i*16*336+64*nt}")
    e(f"v_mov_b32 v6, {fhex(-LN2)}", f"v_mov_b32 v7, {fhex(-LN2)}")
    e("s_waitcnt lgkmcnt(5)")
    for nt in range(5):
        o = ACC + nt*4
        for r in (0, 2): e(f"v_pk_add_f32 {vr(o+r,2)}, {vr(o+r,2)}, {vr(P+nt*4+r,2)}")
    for nt in range(5):
        o = ACC + nt*4
        for r in (0, 2): e(f"v_pk_add_f32 {vr(o+r,2)}, {vr(o+r,2)}, {vr(P+20+nt*4+r,2)}")
    e("s_waitcnt lgkmcnt(0)")
    for nt in range(5):
        o = ACC + nt*4
        for r in (0, 2): e(f"v_pk_add_f32 {vr(o+r,2)}, {vr(o+r,2)}, {vr(P+40+nt*4+r,2)}")
    EX = ACC + 20; XX = ACC + 40; PK = ACC + 60
    for nt in range(5):
        o = ACC + nt*4; ex = EX + nt*4
        for r in range(4): e(f"v_exp_f32 v{ex+r}, v{o+r}")
    for nt in range(5):
        o = ACC + nt*4; ex = EX + nt*4
        for r in (0, 2): e(f"v_pk_add_f32 {vr(ex+r,2)}, {vr(ex+r,2)}, 1.0 op_sel_hi:[1,0]")
        if 'do' not in OPT:
            for r in (0, 2): e(f"v_pk_mul_f32 {vr(o+r,2)}, {vr(o+r,2)}, v[6:7]")
    for nt in range(5):
        ex = EX + nt*4
        for r in range(4): e(f"v_rcp_f32 v{ex+r}, v{ex+r}")
    e("s_nop 0")
    if 'do' not in OPT:
        for nt in range(5):
            o = ACC + nt*4; ex = EX + nt*4
            for r in (0, 2): e(f"v_pk_mul_f32 {vr(o+r,2)}, {vr(o+r,2)}, {vr(ex+r,2)}")
    stamp(a, 10)
    e(q.wait("u"))
    for n in range(7):
        e(f"v_xor_b32 v{ust(n)+2}, s33, v{ust(n)+2}", f"v_xor_b32 v{ust(n)+3}, s33, v{ust(n)+3}", f"ds_write_b128 v3, {vr(ust(n),4)} offset:{1024*n}")
    e("s_waitcnt lgkmcnt(0)", "s_barrier")
    UA4 = HB
    def urd4(k):
        return [f"ds_read_b64_tr_b16 {vr(UA4+k*24+4*t+2*hf,2)}, v{UA} offset:{k*7168+hf*1792+t*64}" for t in range(6) for hf in range(2)]
    def ymf4(k):
        return [f"v_mfma_f32_16x16x32_bf16 {vr(Y+4*t,4)}, {vr(UA4+k*24+4*t,4)}, {ar(240+4*k,4)}, " + ("0" if k == 0 else vr(Y+4*t, 4)) for t in range(6)]
    e(*urd4(0)); e(*urd4(1))
    xu = []
    for nt in range(5):
        xx = XX + nt*4
        xu += [f"v_lshlrev_b32 v{xx}, 16, v{XR+2*nt}", f"v_and_b32 v{xx+1}, 0xffff0000, v{XR+2*nt}",
               f"v_lshlrev_b32 v{xx+2}, 16, v{XR+2*nt+1}", f"v_and_b32 v{xx+3}, 0xffff0000, v{XR+2*nt+1}"]
    e(q.wait("x"))
    e(*xu[:10])
    e("s_waitcnt lgkmcnt(12)")
    e(*interleave(ymf4(0), [[x, y] for x, y in zip(urd4(2)[0::2], urd4(2)[1::2])], start=0, per=1))
    e(*xu[10:])
    e("s_waitcnt lgkmcnt(12)")
    e(*interleave(ymf4(1), [[x, y] for x, y in zip(urd4(3)[0::2], urd4(3)[1::2])], start=0, per=1))
    e(f"s_mul_i32 s56, s24, 7424", f"s_add_u32 s56, s56, {YB}", "v_mov_b32 v7, 464", "v_mul_u32_u24 v5, v7, v1", "v_add_u32 v5, s56, v5",
      "v_lshlrev_b32 v6, 4, v2", "v_sub_u32 v7, v5, v6", "v_add_u32 v7, 52, v7", "v_add_u32 v5, v5, v6")
    e("s_waitcnt lgkmcnt(12)")
    e(*ymf4(2))
    e("s_waitcnt lgkmcnt(0)")
    e(*ymf4(3))
    stamp(a, 16)
    e("s_nop 7", "s_nop 1")
    e("s_cmp_eq_u32 s27, 0", "s_cbranch_scc1 K2_direct")
    for t in range(6):
        for r in (0, 2):
            o0 = (5-t)*16 + 3 - r
            e(f"ds_write2_b32 v7, v{Y+4*t+r}, v{Y+4*t+r+1} offset0:{o0} offset1:{o0-1}")
    e("s_waitcnt lgkmcnt(0)")
    for nt in range(5): e(f"ds_read_b128 {vr(Y+4*nt,4)}, v5 offset:{64+64*nt}")
    e("s_waitcnt lgkmcnt(0)", "s_branch K2_ydone")
    a.lab("K2_direct")
    e("s_cmp_eq_u32 s91, 0", "s_cselect_b64 s[58:59], -1, 0", "v_cmp_eq_u32 vcc, 0, v2", "s_and_b64 vcc, vcc, s[58:59]", "s_nop 1", f"v_cndmask_b32_e64 v{Y}, v{Y}, 0, vcc")
    a.lab("K2_ydone")
    for nt in range(5):
        o = ACC + nt*4; xx = XX + nt*4; pk = PK + nt*2
        if 'dy' in OPT:
            for r in range(4): e(f"v_mov_b32 v{xx+r}, v{Y+4*nt+r}")
        elif 'do' in OPT:
            for r in range(4): e(f"v_mov_b32 v{xx+r}, v{o+r}")
        else:
            for r in (0, 2): e(f"v_pk_fma_f32 {vr(xx+r,2)}, {vr(o+r,2)}, {vr(Y+4*nt+r,2)}, {vr(xx+r,2)}")
        e(f"v_cvt_pk_bf16_f32 v{pk}, v{xx}, v{xx+1}", f"v_cvt_pk_bf16_f32 v{pk+1}, v{xx+2}, v{xx+3}")
        e(f"buffer_store_dwordx2 {vr(pk,2)}, v{XO}, s[20:23], s31 offen offset:{32*nt}")
    e("s_cmp_lg_u32 s92, 0", "s_cbranch_scc1 K2_fin")
    e("s_mov_b32 s62, 0")
    a.lab("K2_ep")
    e("s_waitcnt vmcnt(0)", "s_mov_b64 exec, 0x3f3f3f3f", "s_mov_b32 exec_hi, 0x3f3f3f3f")
    e(f"v_cmp_ne_u32 s[56:57], {NONCE}, v242", f"v_cmp_ne_u32 s[58:59], {NONCE}, v243", f"v_cmp_ne_u32 vcc, {NONCE}, v244", "s_nop 1",
      "s_or_b64 s[56:57], s[56:57], s[58:59]", "s_or_b64 s[56:57], s[56:57], vcc", f"v_cmp_ne_u32 vcc, {NONCE}, v245", "s_nop 1", "s_or_b64 s[56:57], s[56:57], vcc",
      "s_mov_b64 exec, -1", f"v_cmp_ne_u32 vcc, {NONCE}, v246", "s_nop 1", "s_or_b64 s[56:57], s[56:57], vcc",
      "s_cmp_eq_u64 s[56:57], 0", "s_cbranch_scc1 K2_epd", "s_add_u32 s62, s62, 1", f"s_cmp_ge_u32 s62, {SPIN}", "s_cbranch_scc1 K2_epd")
    e(f"s_mov_b32 s56, {FL_H}", "v_lshl_add_u32 v5, v0, 4, s56")
    for n in range(4): e(f"global_load_dword v{242+n}, v5, s[86:87] offset:{1024*n} sc1")
    e(f"global_load_dword v246, v{PU}, s[86:87] sc1", "s_branch K2_ep")
    a.lab("K2_epd")
    e(f"v_mov_b32 v5, {EPO}", f"v_mov_b32 v6, {NONCE}", "s_mov_b64 exec, 1", "global_store_dword v5, v6, s[86:87] sc1")
    a.lab("K2_fin")
    stamp_out(a)
```

```python
from asmlib import *
from gen import LN2, H_SZ, U_OFF, U_SZ, SRD3
STAMP = False
OPT = set()
FL = 0xB00000; FL_H = FL; FL_U = FL + 4096; EPO = FL + 16384
SPIN = 200000
NONCE = "s65"
K2_SETUP_VM = 8
USTEP = 6
XSTEP = 8
HV, UA, XO, PH, PU = 8, 12, 13, 14, 15
Y, ACC, HB, US6 = 16, 40, 120, 248
PDH, PDU = 252, 253
UB, YB, RB = 102400, 131072, 0
def ust(n): return Y + 4*n if n < 6 else US6

def k2_setup(a):
    e = a.e
    e("s_sub_u32 s56, 32, s90", "s_and_b32 s56, s56, 31", "s_mul_i32 s57, s91, 20", "s_sub_u32 s58, 140, s57",
      "s_cmp_ge_u32 s91, 4", "s_cselect_b32 s27, 1, 0", "s_cselect_b32 s28, s56, s90", "s_cselect_b32 s29, s58, s57")
    e("s_and_b32 s56, s24, 1", "s_lshl_b32 s56, s56, 10", "s_lshr_b32 s57, s24, 1", "s_lshl_b32 s57, s57, 5", "s_add_u32 s30, s56, s57", "s_add_u32 s30, s30, s90")
    e("v_lshlrev_b32 v5, 6, v1", "v_add_u32 v5, s30, v5", "v_lshlrev_b32 v5, 12, v5",
      "v_lshrrev_b32 v6, 1, v2", "v_lshl_add_u32 v5, v6, 4, v5")
    e("v_and_b32 v6, 1, v2", "v_cmp_eq_u32 vcc, 0, v6", "s_nop 1", "s_mov_b64 exec, vcc")
    for k in range(4): e(f"global_load_dwordx4 {ar(240+4*k,4)}, v5, s[38:39] offset:{32*k}")
    e("s_not_b64 exec, exec")
    for k in range(4): e(f"global_load_dwordx4 {ar(240+4*k,4)}, v5, s[40:41] offset:{32*k}")
    e("s_mov_b64 exec, -1")
    e("s_mov_b32 s4, s86", "s_mov_b32 s5, s87", f"s_mov_b32 s6, {H_SZ}")
    e("s_mov_b32 s8, s86", "s_mov_b32 s9, s87", f"s_add_u32 s8, s8, {U_OFF}", "s_addc_u32 s9, s9, 0", f"s_mov_b32 s10, {U_SZ}")
    e("v_mov_b32 v7, 81920", f"v_mul_u32_u24 v{XO}, v7, v1", f"v_lshl_add_u32 v{XO}, v2, 3, v{XO}")
    e("s_mul_i32 s31, s30, 1280", "s_mul_i32 s56, s91, 160", "s_add_u32 s31, s31, s56")
    e("s_mul_i32 s32, s28, 81920")
    e("s_mul_i32 s56, s24, 448", "v_add_u32 v5, s56, v0")
    for n in range(7):
        e(f"v_add_u32 v6, {64*n}, v5", "v_mul_u32_u24 v7, 2341, v6", "v_lshrrev_b32 v7, 16, v7",
          "v_mul_u32_u24 v3, 28, v7", "v_sub_u32 v6, v6, v3", "v_add_u32 v6, s29, v6",
          "v_subrev_u32 v3, 80, v6", "v_cmp_le_u32 vcc, 80, v6", "v_lshlrev_b32 v4, 8, v7", "v_cndmask_b32 v6, v6, v3, vcc",
          "v_lshl_add_u32 v4, v7, 10, v4", f"v_lshl_add_u32 v{ust(n)}, v6, 4, v4")
    for mu in range(4):
        e(f"s_add_u32 s56, s24, {mu}", "s_and_b32 s56, s56, 3", "s_lshl_b32 s56, s56, 10", f"v_lshl_add_u32 v{HV+mu}, v0, 4, s56")
    e("s_mul_i32 s34, s90, 48", "s_mul_i32 s56, s24, 12", "s_add_u32 s34, s34, s56", "s_lshl_b32 s34, s34, 12")
    e("v_lshrrev_b32 v5, 2, v1", "v_lshrrev_b32 v6, 1, v2", "v_lshl_add_u32 v5, v6, 3, v5", "v_mul_u32_u24 v5, 448, v5",
      "v_and_b32 v6, 3, v1", "v_lshl_add_u32 v5, v6, 4, v5", "v_and_b32 v6, 1, v2", "v_lshl_add_u32 v5, v6, 3, v5", f"v_add_u32 v{UA}, {UB}, v5")
    e("s_lshr_b32 s56, s90, 2", "s_lshl_b32 s56, s56, 9", "s_lshl_b32 s57, s24, 7", "s_add_u32 s56, s56, s57", f"s_add_u32 s56, s56, {FL_H}",
      f"v_lshl_add_u32 v{PH}, v0, 4, s56", f"s_mov_b32 s56, {FL_U}", f"v_lshl_add_u32 v{PU}, v0, 4, s56")
    e("s_cmp_eq_u32 s27, 0", "s_cselect_b32 s33, 0x80008000, 0")
    e("s_or_b32 s92, s2, s24")

class VQ:
    def __init__(s): s.q = []
    def add(s, tag): s.q.append(tag)
    def wait(s, tag):
        idx = max(i for i, t in enumerate(s.q) if t == tag)
        return f"s_waitcnt vmcnt({len(s.q) - 1 - idx})"

def gen_k2f(a, ools, stamp, stamp_out):
    e = a.e
    e("s_mov_b32 s62, 0", "s_mov_b64 exec, 0x3f")
    a.lab("K2_hp")
    e(f"global_load_dword v{PDH}, v{PH}, s[86:87] sc1", "s_waitcnt vmcnt(0)", f"v_cmp_ne_u32 vcc, {NONCE}, v{PDH}", "s_add_u32 s62, s62, 1", "s_nop 1",
      "s_cbranch_vccz K2_hpd", f"s_cmp_lt_u32 s62, {SPIN}", "s_cbranch_scc1 K2_hp")
    a.lab("K2_hpd")
    e("s_mov_b64 exec, -1")
    stamp(a, 7)
    q = VQ()
    def hload(k, q=q):
        g = []
        hb = HB + (k % 8)*16
        for mu in range(4):
            g.append([f"buffer_load_dwordx4 {vr(hb+4*mu,4)}, v{HV+mu}, s[4:7], s34 offen sc1"]); q.add(f"h{k}")
        g[-1].append("s_add_u32 s34, s34, 4096")
        return g
    NPRE = 3
    for k in range(NPRE):
        for g in hload(k): e(*g)
    stamp(a, 8)
    def smf(kk):
        hb = HB + (kk % 8)*16; m = []
        for nt in range(5):
            for mu in range(4):
                d = ACC + (mu*5+nt)*4
                m.append((mfma0 if kk == 0 else mfma)(d, 20*kk+4*nt, hb+4*mu, aa=True))
        return m
    UAb = HB + 64
    def urd(k):
        r = []
        for t in range(6):
            for hf in range(2):
                r.append(f"ds_read_b64_tr_b16 {vr(UAb+(k&1)*24+4*t+2*hf,2)}, v{UA} offset:{k*7168+hf*1792+t*64}")
        return r
    def ymf(k):
        m = []
        for t in range(6):
            c = "0" if k == 0 else vr(Y+4*t, 4)
            m.append(f"v_mfma_f32_16x16x32_bf16 {vr(Y+4*t,4)}, {vr(UAb+(k&1)*24+4*t,4)}, {ar(240+4*k,4)}, {c}")
        return m
    XR = HB + 7*16
    PW = [HV+1, HV+2, HV+3]; PRD = PH
    def steps(e, lab, stamp9, q, k0, k1, early, sfx):
      for kk in range(k0, k1):
          e(q.wait(f"h{kk}"))
          fill = []
          sched = {0: [3, 4], 1: [5, 6], 2: [7, 8], 3: [9, 10], 4: [11]}
          if kk == USTEP - 2:
              fill.append([f"global_load_dword v{PDU}, v{PU}, s[86:87] sc1"]); q.add("uf")
          for hk in sched.get(kk, []): fill += hload(hk, q)
          if kk == USTEP and early:
              for n in range(7):
                  fill.append([f"buffer_load_dwordx4 {vr(ust(n),4)}, v{ust(n)}, s[8:11], s32 offen sc1"]); q.add("u")
          if kk == XSTEP:
              for nt in range(5):
                  fill.append([f"buffer_load_dwordx2 {vr(XR+2*nt,2)}, v{XO}, s[12:15], s31 offen offset:{32*nt}"]); q.add("x")
          if kk == 9:
              fill.append(["v_mov_b32 v7, 336", "v_mul_u32_u24 v5, v7, v1"]); fill.append(["v_lshl_add_u32 v5, v2, 4, v5"])
              for mu in range(1, 4):
                  fill.append([f"s_add_u32 s56, s24, {mu}", "s_and_b32 s56, s56, 3", "s_mul_i32 s56, s56, 3", f"s_add_u32 s56, s56, {mu-1}", f"s_mul_i32 s56, s56, {16*336}",
                    f"v_add_u32 v{PW[mu-1]}, s56, v5"])
              fill.append([f"s_mul_i32 s56, s24, {3*16*336}", f"v_add_u32 v{PRD}, s56, v5"])
              fill.append(["s_mul_i32 s57, s24, 7168", f"s_add_u32 s57, s57, {UB}", "v_lshl_add_u32 v3, v0, 4, s57"])
          if kk == 10:
              e("s_cmp_lg_u32 s92, 0", f"s_cbranch_scc1 K2_noep{sfx}")
              e(f"s_mov_b32 s56, {FL_H}", "v_lshl_add_u32 v5, v0, 4, s56")
              for n in range(4): e(f"global_load_dword v{242+n}, v5, s[86:87] offset:{1024*n} sc1")
              e(f"global_load_dword v246, v{PU}, s[86:87] sc1")
              lab(f"K2_noep{sfx}")
          if kk < 11:
              e(*interleave(smf(kk), fill, start=1, per=1))
          else:
              hb = HB + (kk % 8)*16
              M = lambda mu, nt: mfma(ACC + (mu*5+nt)*4, 20*kk+4*nt, hb+4*mu, aa=True)
              Wr = lambda mu, nt: f"ds_write_b128 v{PW[mu-1]}, {vr(ACC+(mu*5+nt)*4,4)} offset:{RB+64*nt}"
              for nt in range(5): e(M(1, nt))
              for nt in range(5): e(M(2, nt))
              for nt in range(5): e(M(3, nt), Wr(1, nt))
              for nt in range(5): e(M(0, nt), Wr(2, nt))
              for nt in range(5): e(Wr(3, nt))
          if kk == XSTEP - 1:
              e("s_mov_b32 s12, s36", "s_mov_b32 s13, s37", f"s_mov_b32 s14, {2048*1280}")
          if kk == 8: stamp9()
    P = HB; EX = ACC + 20; XX = ACC + 40; PK = ACC + 60
    def tail1(e):
      e("s_waitcnt lgkmcnt(0)", "s_barrier")
      for i in range(3):
          for nt in range(5): e(f"ds_read_b128 {vr(P+(i*5+nt)*4,4)}, v{PRD} offset:{RB+i*16*336+64*nt}")
      e(f"v_mov_b32 v6, {fhex(-LN2)}", f"v_mov_b32 v7, {fhex(-LN2)}")
      e("s_waitcnt lgkmcnt(5)")
      for nt in range(5):
          o = ACC + nt*4
          for r in (0, 2): e(f"v_pk_add_f32 {vr(o+r,2)}, {vr(o+r,2)}, {vr(P+nt*4+r,2)}")
      for nt in range(5):
          o = ACC + nt*4
          for r in (0, 2): e(f"v_pk_add_f32 {vr(o+r,2)}, {vr(o+r,2)}, {vr(P+20+nt*4+r,2)}")
      e("s_waitcnt lgkmcnt(0)")
      for nt in range(5):
          o = ACC + nt*4
          for r in (0, 2): e(f"v_pk_add_f32 {vr(o+r,2)}, {vr(o+r,2)}, {vr(P+40+nt*4+r,2)}")
      for nt in range(5):
          o = ACC + nt*4; ex = EX + nt*4
          for r in range(4): e(f"v_exp_f32 v{ex+r}, v{o+r}")
      for nt in range(5):
          o = ACC + nt*4; ex = EX + nt*4
          for r in (0, 2): e(f"v_pk_add_f32 {vr(ex+r,2)}, {vr(ex+r,2)}, 1.0 op_sel_hi:[1,0]")
          if 'do' not in OPT:
              for r in (0, 2): e(f"v_pk_mul_f32 {vr(o+r,2)}, {vr(o+r,2)}, v[6:7]")
      for nt in range(5):
          ex = EX + nt*4
          for r in range(4): e(f"v_rcp_f32 v{ex+r}, v{ex+r}")
      e("s_nop 0")
      if 'do' not in OPT:
          for nt in range(5):
              o = ACC + nt*4; ex = EX + nt*4
              for r in (0, 2): e(f"v_pk_mul_f32 {vr(o+r,2)}, {vr(o+r,2)}, {vr(ex+r,2)}")

    import copy
    steps(e, a.lab, lambda: stamp(a, 9), q, 0, USTEP, True, "a")
    e(q.wait("uf"))
    e(f"v_cmp_ne_u32 vcc, {NONCE}, v{PDU}", "s_nop 2", "s_cbranch_vccnz K2_late")
    qb = copy.deepcopy(q)
    steps(e, a.lab, lambda: stamp(a, 9), q, USTEP, 12, True, "b")
    tail1(e)
    stamp(a, 10)
    e(q.wait("u"))
    a.lab("K2_join")
    def late(b):
        b.lab("K2_late")
        steps(b.e, b.lab, lambda: stamp(b, 9), qb, USTEP, 12, False, "c")
        tail1(b.e)
        stamp(b, 10)
        b.e("s_mov_b32 s62, 0")
        b.lab("K2_usp1")
        b.e(f"global_load_dword v{PDU}, v{PU}, s[86:87] sc1", "s_waitcnt vmcnt(0)", f"v_cmp_ne_u32 vcc, {NONCE}, v{PDU}", "s_add_u32 s62, s62, 1", "s_nop 1",
            "s_cbranch_vccz K2_usp2", f"s_cmp_lt_u32 s62, {SPIN}", "s_cbranch_scc1 K2_usp1")
        b.lab("K2_usp2")
        for n in range(7): b.e(f"buffer_load_dwordx4 {vr(ust(n),4)}, v{ust(n)}, s[8:11], s32 offen sc1")
        b.e("s_waitcnt vmcnt(0)", "s_branch K2_join")
    ools.append(late)
    for n in range(7):
        e(f"v_xor_b32 v{ust(n)+2}, s33, v{ust(n)+2}", f"v_xor_b32 v{ust(n)+3}, s33, v{ust(n)+3}", f"ds_write_b128 v3, {vr(ust(n),4)} offset:{1024*n}")
    e("s_waitcnt lgkmcnt(0)", "s_barrier")
    UA4 = HB
    def urd4(k):
        return [f"ds_read_b64_tr_b16 {vr(UA4+k*24+4*t+2*hf,2)}, v{UA} offset:{k*7168+hf*1792+t*64}" for t in range(6) for hf in range(2)]
    def ymf4(k):
        return [f"v_mfma_f32_16x16x32_bf16 {vr(Y+4*t,4)}, {vr(UA4+k*24+4*t,4)}, {ar(240+4*k,4)}, " + ("0" if k == 0 else vr(Y+4*t, 4)) for t in range(6)]
    e(*urd4(0)); e(*urd4(1))
    xu = []
    for nt in range(5):
        xx = XX + nt*4
        xu += [f"v_lshlrev_b32 v{xx}, 16, v{XR+2*nt}", f"v_and_b32 v{xx+1}, 0xffff0000, v{XR+2*nt}",
               f"v_lshlrev_b32 v{xx+2}, 16, v{XR+2*nt+1}", f"v_and_b32 v{xx+3}, 0xffff0000, v{XR+2*nt+1}"]
    e(q.wait("x"))
    e(*xu[:10])
    e("s_waitcnt lgkmcnt(12)")
    e(*interleave(ymf4(0), [[x, y] for x, y in zip(urd4(2)[0::2], urd4(2)[1::2])], start=0, per=1))
    e(*xu[10:])
    e("s_waitcnt lgkmcnt(12)")
    e(*interleave(ymf4(1), [[x, y] for x, y in zip(urd4(3)[0::2], urd4(3)[1::2])], start=0, per=1))
    e(f"s_mul_i32 s56, s24, 7424", f"s_add_u32 s56, s56, {YB}", "v_mov_b32 v7, 464", "v_mul_u32_u24 v5, v7, v1", "v_add_u32 v5, s56, v5",
      "v_lshlrev_b32 v6, 4, v2", "v_sub_u32 v7, v5, v6", "v_add_u32 v7, 52, v7", "v_add_u32 v5, v5, v6")
    e("s_waitcnt lgkmcnt(12)")
    e(*ymf4(2))
    e("s_waitcnt lgkmcnt(0)")
    e(*ymf4(3))
    stamp(a, 16)
    e("s_nop 7", "s_nop 1")
    e("s_cmp_eq_u32 s27, 0", "s_cbranch_scc1 K2_direct")
    for t in range(6):
        for r in (0, 2):
            o0 = (5-t)*16 + 3 - r
            e(f"ds_write2_b32 v7, v{Y+4*t+r}, v{Y+4*t+r+1} offset0:{o0} offset1:{o0-1}")
    e("s_waitcnt lgkmcnt(0)")
    for nt in range(5): e(f"ds_read_b128 {vr(Y+4*nt,4)}, v5 offset:{64+64*nt}")
    e("s_waitcnt lgkmcnt(0)", "s_branch K2_ydone")
    a.lab("K2_direct")
    e("s_cmp_eq_u32 s91, 0", "s_cselect_b64 s[58:59], -1, 0", "v_cmp_eq_u32 vcc, 0, v2", "s_and_b64 vcc, vcc, s[58:59]", "s_nop 1", f"v_cndmask_b32_e64 v{Y}, v{Y}, 0, vcc")
    a.lab("K2_ydone")
    for nt in range(5):
        o = ACC + nt*4; xx = XX + nt*4; pk = PK + nt*2
        if 'dy' in OPT:
            for r in range(4): e(f"v_mov_b32 v{xx+r}, v{Y+4*nt+r}")
        elif 'do' in OPT:
            for r in range(4): e(f"v_mov_b32 v{xx+r}, v{o+r}")
        else:
            for r in (0, 2): e(f"v_pk_fma_f32 {vr(xx+r,2)}, {vr(o+r,2)}, {vr(Y+4*nt+r,2)}, {vr(xx+r,2)}")
        e(f"v_cvt_pk_bf16_f32 v{pk}, v{xx}, v{xx+1}", f"v_cvt_pk_bf16_f32 v{pk+1}, v{xx+2}, v{xx+3}")
        e(f"buffer_store_dwordx2 {vr(pk,2)}, v{XO}, s[20:23], s31 offen offset:{32*nt}")
    e("s_cmp_lg_u32 s92, 0", "s_cbranch_scc1 K2_fin")
    e("s_mov_b32 s62, 0")
    a.lab("K2_ep")
    e("s_waitcnt vmcnt(0)", "s_mov_b64 exec, 0x3f3f3f3f", "s_mov_b32 exec_hi, 0x3f3f3f3f")
    e(f"v_cmp_ne_u32 s[56:57], {NONCE}, v242", f"v_cmp_ne_u32 s[58:59], {NONCE}, v243", f"v_cmp_ne_u32 vcc, {NONCE}, v244", "s_nop 1",
      "s_or_b64 s[56:57], s[56:57], s[58:59]", "s_or_b64 s[56:57], s[56:57], vcc", f"v_cmp_ne_u32 vcc, {NONCE}, v245", "s_nop 1", "s_or_b64 s[56:57], s[56:57], vcc",
      "s_mov_b64 exec, -1", f"v_cmp_ne_u32 vcc, {NONCE}, v246", "s_nop 1", "s_or_b64 s[56:57], s[56:57], vcc",
      "s_cmp_eq_u64 s[56:57], 0", "s_cbranch_scc1 K2_epd", "s_add_u32 s62, s62, 1", f"s_cmp_ge_u32 s62, {SPIN}", "s_cbranch_scc1 K2_epd")
    e(f"s_mov_b32 s56, {FL_H}", "v_lshl_add_u32 v5, v0, 4, s56")
    for n in range(4): e(f"global_load_dword v{242+n}, v5, s[86:87] offset:{1024*n} sc1")
    e(f"global_load_dword v246, v{PU}, s[86:87] sc1", "s_branch K2_ep")
    a.lab("K2_epd")
    e(f"v_mov_b32 v5, {EPO}", f"v_mov_b32 v6, {NONCE}", "s_mov_b64 exec, 1", "global_store_dword v5, v6, s[86:87] sc1")
    a.lab("K2_fin")
    stamp_out(a)
```

```python
from asmlib import *
from gen import LN2, H_SZ, U_OFF, U_SZ, SRD3
STAMP = False
OPT = set()
FL = 0xB00000; FL_H = FL; FL_U = FL + 4096; EPO = FL + 16384
SPIN = 200000
NONCE = "s65"
K2_SETUP_VM = 0
WSTEP = 1
USTEP = 6
XSTEP = 8
HV, UA, XO, PH, PU = 8, 12, 13, 14, 15
Y, ACC, HB, US6 = 16, 40, 120, 248
PDH, PDU = 252, 253
UB, YB, RB = 102400, 131072, 0
def ust(n): return Y + 4*n if n < 6 else US6

def ws_loads(a):
    e = a.e
    e("v_lshlrev_b32 v5, 6, v1", "v_add_u32 v5, s30, v5", "v_lshlrev_b32 v5, 12, v5", "v_lshrrev_b32 v6, 1, v2", "v_lshl_add_u32 v5, v6, 4, v5")
    e("v_and_b32 v6, 1, v2", "v_cmp_eq_u32 vcc, 0, v6", "s_nop 1", "s_mov_b64 exec, vcc")
    for k in range(4): e(f"global_load_dwordx4 {ar(240+4*k,4)}, v5, s[38:39] offset:{32*k}")
    e("s_not_b64 exec, exec")
    for k in range(4): e(f"global_load_dwordx4 {ar(240+4*k,4)}, v5, s[40:41] offset:{32*k}")
    e("s_mov_b64 exec, -1")

def k2_setup(a, ws):
    e = a.e
    e("s_sub_u32 s56, 32, s90", "s_and_b32 s56, s56, 31", "s_mul_i32 s57, s91, 20", "s_sub_u32 s58, 140, s57",
      "s_cmp_ge_u32 s91, 4", "s_cselect_b32 s27, 1, 0", "s_cselect_b32 s28, s56, s90", "s_cselect_b32 s29, s58, s57")
    e("s_and_b32 s56, s24, 1", "s_lshl_b32 s56, s56, 10", "s_lshr_b32 s57, s24, 1", "s_lshl_b32 s57, s57, 5", "s_add_u32 s30, s56, s57", "s_add_u32 s30, s30, s90")
    if ws: ws_loads(a)
    e("s_mov_b32 s4, s86", "s_mov_b32 s5, s87", f"s_mov_b32 s6, {H_SZ}")
    e("s_mov_b32 s8, s86", "s_mov_b32 s9, s87", f"s_add_u32 s8, s8, {U_OFF}", "s_addc_u32 s9, s9, 0", f"s_mov_b32 s10, {U_SZ}")
    e("v_mov_b32 v7, 81920", f"v_mul_u32_u24 v{XO}, v7, v1", f"v_lshl_add_u32 v{XO}, v2, 3, v{XO}")
    e("s_mul_i32 s31, s30, 1280", "s_mul_i32 s56, s91, 160", "s_add_u32 s31, s31, s56")
    e("s_mul_i32 s32, s28, 81920")
    e("s_mul_i32 s56, s24, 448", "v_add_u32 v5, s56, v0", "s_movk_i32 s35, 20160")
    for n in range(7):
        e(f"v_add_u32 v6, {64*n}, v5", "v_mul_u32_u24 v7, 2341, v6", "v_lshrrev_b32 v7, 16, v7",
          "v_mul_u32_u24 v3, 28, v7", "v_sub_u32 v6, v6, v3", "v_add_u32 v6, s29, v6",
          "v_subrev_u32 v3, 80, v6", "v_cmp_le_u32 vcc, 80, v6", "v_lshlrev_b32 v4, 8, v7", "v_cndmask_b32 v6, v6, v3, vcc",
          "v_lshl_add_u32 v4, v7, 6, v4", "v_mul_u32_u24 v3, 205, v6", "v_lshrrev_b32 v3, 12, v3", "v_mad_u32_u24 v4, v3, s35, v4", f"v_lshl_add_u32 v{ust(n)}, v6, 4, v4")
    for mu in range(4):
        e(f"s_add_u32 s56, s24, {mu}", "s_and_b32 s56, s56, 3", "s_lshl_b32 s56, s56, 10", f"v_lshl_add_u32 v{HV+mu}, v0, 4, s56")
    e("s_mul_i32 s34, s90, 48", "s_mul_i32 s56, s24, 12", "s_add_u32 s34, s34, s56", "s_lshl_b32 s34, s34, 12")
    e("v_lshrrev_b32 v5, 2, v1", "v_lshrrev_b32 v6, 1, v2", "v_lshl_add_u32 v5, v6, 3, v5", "v_mul_u32_u24 v5, 448, v5",
      "v_and_b32 v6, 3, v1", "v_lshl_add_u32 v5, v6, 4, v5", "v_and_b32 v6, 1, v2", "v_lshl_add_u32 v5, v6, 3, v5", f"v_add_u32 v{UA}, {UB}, v5")
    e("s_lshr_b32 s56, s90, 2", "s_lshl_b32 s56, s56, 9", "s_lshl_b32 s57, s24, 7", "s_add_u32 s56, s56, s57", f"s_add_u32 s56, s56, {FL_H}",
      f"v_lshl_add_u32 v{PH}, v0, 4, s56", f"s_mov_b32 s56, {FL_U}", f"v_lshl_add_u32 v{PU}, v0, 4, s56")
    e("s_cmp_eq_u32 s27, 0", "s_cselect_b32 s33, 0x80008000, 0")
    e("s_or_b32 s92, s2, s24")

class VQ:
    def __init__(s): s.q = []
    def add(s, tag): s.q.append(tag)
    def wait(s, tag):
        idx = max(i for i, t in enumerate(s.q) if t == tag)
        return f"s_waitcnt vmcnt({len(s.q) - 1 - idx})"

def gen_k2f(a, ools, stamp, stamp_out):
    e = a.e
    e("s_mov_b32 s62, 0", "s_mov_b64 exec, 0x3f")
    a.lab("K2_hp")
    e(f"global_load_dword v{PDH}, v{PH}, s[86:87] sc1", "s_waitcnt vmcnt(0)", f"v_cmp_ne_u32 vcc, {NONCE}, v{PDH}", "s_add_u32 s62, s62, 1", "s_nop 1",
      "s_cbranch_vccz K2_hpd", f"s_cmp_lt_u32 s62, {SPIN}", "s_cbranch_scc1 K2_hp")
    a.lab("K2_hpd")
    e("s_mov_b64 exec, -1")
    stamp(a, 7)
    q = VQ()
    def hload(k, q=q):
        g = []
        hb = HB + (k % 8)*16
        for mu in range(4):
            g.append([f"buffer_load_dwordx4 {vr(hb+4*mu,4)}, v{HV+mu}, s[4:7], s34 offen sc1"]); q.add(f"h{k}")
        g[-1].append("s_add_u32 s34, s34, 4096")
        return g
    NPRE = 3
    for k in range(NPRE):
        for g in hload(k): e(*g)
    stamp(a, 8)
    def smf(kk):
        hb = HB + (kk % 8)*16; m = []
        for nt in range(5):
            for mu in range(4):
                d = ACC + (mu*5+nt)*4
                m.append((mfma0 if kk == 0 else mfma)(d, 20*kk+4*nt, hb+4*mu, aa=True))
        return m
    UAb = HB + 64
    def urd(k):
        r = []
        for t in range(6):
            for hf in range(2):
                r.append(f"ds_read_b64_tr_b16 {vr(UAb+(k&1)*24+4*t+2*hf,2)}, v{UA} offset:{k*7168+hf*1792+t*64}")
        return r
    def ymf(k):
        m = []
        for t in range(6):
            c = "0" if k == 0 else vr(Y+4*t, 4)
            m.append(f"v_mfma_f32_16x16x32_bf16 {vr(Y+4*t,4)}, {vr(UAb+(k&1)*24+4*t,4)}, {ar(240+4*k,4)}, {c}")
        return m
    XR = HB + 7*16
    PW = [HV+1, HV+2, HV+3]; PRD = PH
    def steps(e, lab, stamp9, q, k0, k1, early, sfx):
      for kk in range(k0, k1):
          e(q.wait(f"h{kk}"))
          fill = []
          sched = {0: [3, 4], 1: [5, 6], 2: [7, 8], 3: [9, 10], 4: [11]}
          if kk == USTEP - 2:
              fill.append([f"global_load_dword v{PDU}, v{PU}, s[86:87] sc1"]); q.add("uf")
          for hk in sched.get(kk, []): fill += hload(hk, q)
          if kk == USTEP and early:
              for n in range(7):
                  fill.append([f"buffer_load_dwordx4 {vr(ust(n),4)}, v{ust(n)}, s[8:11], s32 offen sc1"]); q.add("u")
          if kk == XSTEP:
              for nt in range(5):
                  fill.append([f"buffer_load_dwordx2 {vr(XR+2*nt,2)}, v{XO}, s[12:15], s31 offen offset:{32*nt}"]); q.add("x")
          if kk == 9:
              fill.append(["v_mov_b32 v7, 336", "v_mul_u32_u24 v5, v7, v1"]); fill.append(["v_lshl_add_u32 v5, v2, 4, v5"])
              for mu in range(1, 4):
                  fill.append([f"s_add_u32 s56, s24, {mu}", "s_and_b32 s56, s56, 3", "s_mul_i32 s56, s56, 3", f"s_add_u32 s56, s56, {mu-1}", f"s_mul_i32 s56, s56, {16*336}",
                    f"v_add_u32 v{PW[mu-1]}, s56, v5"])
              fill.append([f"s_mul_i32 s56, s24, {3*16*336}", f"v_add_u32 v{PRD}, s56, v5"])
              fill.append(["s_mul_i32 s57, s24, 7168", f"s_add_u32 s57, s57, {UB}", "v_lshl_add_u32 v3, v0, 4, s57"])
          if kk == 10:
              e("s_cmp_lg_u32 s92, 0", f"s_cbranch_scc1 K2_noep{sfx}")
              e(f"s_mov_b32 s56, {FL_H}", "v_lshl_add_u32 v5, v0, 4, s56")
              for n in range(4): e(f"global_load_dword v{242+n}, v5, s[86:87] offset:{1024*n} sc1")
              e(f"global_load_dword v246, v{PU}, s[86:87] sc1")
              lab(f"K2_noep{sfx}")
          if kk < 11:
              e(*interleave(smf(kk), fill, start=1, per=1))
          else:
              hb = HB + (kk % 8)*16
              M = lambda mu, nt: mfma(ACC + (mu*5+nt)*4, 20*kk+4*nt, hb+4*mu, aa=True)
              Wr = lambda mu, nt: f"ds_write_b128 v{PW[mu-1]}, {vr(ACC+(mu*5+nt)*4,4)} offset:{RB+64*nt}"
              for nt in range(5): e(M(1, nt))
              for nt in range(5): e(M(2, nt))
              for nt in range(5): e(M(3, nt), Wr(1, nt))
              for nt in range(5): e(M(0, nt), Wr(2, nt))
              for nt in range(5): e(Wr(3, nt))
          if kk == XSTEP - 1:
              e("s_mov_b32 s12, s36", "s_mov_b32 s13, s37", f"s_mov_b32 s14, {2048*1280}")
          if kk == 8: stamp9()
    P = HB; EX = ACC + 20; XX = ACC + 40; PK = ACC + 60
    def tail1(e):
      e("s_waitcnt lgkmcnt(0)", "s_barrier")
      for i in range(3):
          for nt in range(5): e(f"ds_read_b128 {vr(P+(i*5+nt)*4,4)}, v{PRD} offset:{RB+i*16*336+64*nt}")
      e(f"v_mov_b32 v6, {fhex(-LN2)}", f"v_mov_b32 v7, {fhex(-LN2)}")
      e("s_waitcnt lgkmcnt(5)")
      for nt in range(5):
          o = ACC + nt*4
          for r in (0, 2): e(f"v_pk_add_f32 {vr(o+r,2)}, {vr(o+r,2)}, {vr(P+nt*4+r,2)}")
      for nt in range(5):
          o = ACC + nt*4
          for r in (0, 2): e(f"v_pk_add_f32 {vr(o+r,2)}, {vr(o+r,2)}, {vr(P+20+nt*4+r,2)}")
      e("s_waitcnt lgkmcnt(0)")
      for nt in range(5):
          o = ACC + nt*4
          for r in (0, 2): e(f"v_pk_add_f32 {vr(o+r,2)}, {vr(o+r,2)}, {vr(P+40+nt*4+r,2)}")
      for nt in range(5):
          o = ACC + nt*4; ex = EX + nt*4
          for r in range(4): e(f"v_exp_f32 v{ex+r}, v{o+r}")
      for nt in range(5):
          o = ACC + nt*4; ex = EX + nt*4
          for r in (0, 2): e(f"v_pk_add_f32 {vr(ex+r,2)}, {vr(ex+r,2)}, 1.0 op_sel_hi:[1,0]")
          if 'do' not in OPT:
              for r in (0, 2): e(f"v_pk_mul_f32 {vr(o+r,2)}, {vr(o+r,2)}, v[6:7]")
      for nt in range(5):
          ex = EX + nt*4
          for r in range(4): e(f"v_rcp_f32 v{ex+r}, v{ex+r}")
      e("s_nop 0")
      if 'do' not in OPT:
          for nt in range(5):
              o = ACC + nt*4; ex = EX + nt*4
              for r in (0, 2): e(f"v_pk_mul_f32 {vr(o+r,2)}, {vr(o+r,2)}, {vr(ex+r,2)}")

    import copy
    steps(e, a.lab, lambda: stamp(a, 9), q, 0, USTEP, True, "a")
    e(q.wait("uf"))
    e(f"v_cmp_ne_u32 vcc, {NONCE}, v{PDU}", "s_nop 2", "s_cbranch_vccnz K2_late")
    qb = copy.deepcopy(q)
    steps(e, a.lab, lambda: stamp(a, 9), q, USTEP, 12, True, "b")
    tail1(e)
    stamp(a, 10)
    e(q.wait("u"))
    a.lab("K2_join")
    def late(b):
        b.lab("K2_late")
        steps(b.e, b.lab, lambda: stamp(b, 9), qb, USTEP, 12, False, "c")
        tail1(b.e)
        stamp(b, 10)
        b.e("s_mov_b32 s62, 0")
        b.lab("K2_usp1")
        b.e(f"global_load_dword v{PDU}, v{PU}, s[86:87] sc1", "s_waitcnt vmcnt(0)", f"v_cmp_ne_u32 vcc, {NONCE}, v{PDU}", "s_add_u32 s62, s62, 1", "s_nop 1",
            "s_cbranch_vccz K2_usp2", f"s_cmp_lt_u32 s62, {SPIN}", "s_cbranch_scc1 K2_usp1")
        b.lab("K2_usp2")
        for n in range(7): b.e(f"buffer_load_dwordx4 {vr(ust(n),4)}, v{ust(n)}, s[8:11], s32 offen sc1")
        b.e("s_waitcnt vmcnt(0)", "s_branch K2_join")
    ools.append(late)
    for n in range(7):
        e(f"v_xor_b32 v{ust(n)+2}, s33, v{ust(n)+2}", f"v_xor_b32 v{ust(n)+3}, s33, v{ust(n)+3}", f"ds_write_b128 v3, {vr(ust(n),4)} offset:{1024*n}")
    e("s_waitcnt lgkmcnt(0)", "s_barrier")
    UA4 = HB
    def urd4(k):
        return [f"ds_read_b64_tr_b16 {vr(UA4+k*24+4*t+2*hf,2)}, v{UA} offset:{k*7168+hf*1792+t*64}" for t in range(6) for hf in range(2)]
    def ymf4(k):
        return [f"v_mfma_f32_16x16x32_bf16 {vr(Y+4*t,4)}, {vr(UA4+k*24+4*t,4)}, {ar(240+4*k,4)}, " + ("0" if k == 0 else vr(Y+4*t, 4)) for t in range(6)]
    e(*urd4(0)); e(*urd4(1))
    xu = []
    for nt in range(5):
        xx = XX + nt*4
        xu += [f"v_lshlrev_b32 v{xx}, 16, v{XR+2*nt}", f"v_and_b32 v{xx+1}, 0xffff0000, v{XR+2*nt}",
               f"v_lshlrev_b32 v{xx+2}, 16, v{XR+2*nt+1}", f"v_and_b32 v{xx+3}, 0xffff0000, v{XR+2*nt+1}"]
    e(q.wait("x"))
    e(*xu[:10])
    e("s_waitcnt lgkmcnt(12)")
    e(*interleave(ymf4(0), [[x, y] for x, y in zip(urd4(2)[0::2], urd4(2)[1::2])], start=0, per=1))
    e(*xu[10:])
    e("s_waitcnt lgkmcnt(12)")
    e(*interleave(ymf4(1), [[x, y] for x, y in zip(urd4(3)[0::2], urd4(3)[1::2])], start=0, per=1))
    e(f"s_mul_i32 s56, s24, 7424", f"s_add_u32 s56, s56, {YB}", "v_mov_b32 v7, 464", "v_mul_u32_u24 v5, v7, v1", "v_add_u32 v5, s56, v5",
      "v_lshlrev_b32 v6, 4, v2", "v_sub_u32 v7, v5, v6", "v_add_u32 v7, 52, v7", "v_add_u32 v5, v5, v6")
    e("s_waitcnt lgkmcnt(12)")
    e(*ymf4(2))
    e("s_waitcnt lgkmcnt(0)")
    e(*ymf4(3))
    stamp(a, 16)
    e("s_nop 7", "s_nop 1")
    e("s_cmp_eq_u32 s27, 0", "s_cbranch_scc1 K2_direct")
    for t in range(6):
        for r in (0, 2):
            o0 = (5-t)*16 + 3 - r
            e(f"ds_write2_b32 v7, v{Y+4*t+r}, v{Y+4*t+r+1} offset0:{o0} offset1:{o0-1}")
    e("s_waitcnt lgkmcnt(0)")
    for nt in range(5): e(f"ds_read_b128 {vr(Y+4*nt,4)}, v5 offset:{64+64*nt}")
    e("s_waitcnt lgkmcnt(0)", "s_branch K2_ydone")
    a.lab("K2_direct")
    e("s_cmp_eq_u32 s91, 0", "s_cselect_b64 s[58:59], -1, 0", "v_cmp_eq_u32 vcc, 0, v2", "s_and_b64 vcc, vcc, s[58:59]", "s_nop 1", f"v_cndmask_b32_e64 v{Y}, v{Y}, 0, vcc")
    a.lab("K2_ydone")
    for nt in range(5):
        o = ACC + nt*4; xx = XX + nt*4; pk = PK + nt*2
        if 'dy' in OPT:
            for r in range(4): e(f"v_mov_b32 v{xx+r}, v{Y+4*nt+r}")
        elif 'do' in OPT:
            for r in range(4): e(f"v_mov_b32 v{xx+r}, v{o+r}")
        else:
            for r in (0, 2): e(f"v_pk_fma_f32 {vr(xx+r,2)}, {vr(o+r,2)}, {vr(Y+4*nt+r,2)}, {vr(xx+r,2)}")
        e(f"v_cvt_pk_bf16_f32 v{pk}, v{xx}, v{xx+1}", f"v_cvt_pk_bf16_f32 v{pk+1}, v{xx+2}, v{xx+3}")
        e(f"buffer_store_dwordx2 {vr(pk,2)}, v{XO}, s[20:23], s31 offen offset:{32*nt}")
    e("s_cmp_lg_u32 s92, 0", "s_cbranch_scc1 K2_fin")
    e("s_mov_b32 s62, 0")
    a.lab("K2_ep")
    e("s_waitcnt vmcnt(0)", "s_mov_b64 exec, 0x3f3f3f3f", "s_mov_b32 exec_hi, 0x3f3f3f3f")
    e(f"v_cmp_ne_u32 s[56:57], {NONCE}, v242", f"v_cmp_ne_u32 s[58:59], {NONCE}, v243", f"v_cmp_ne_u32 vcc, {NONCE}, v244", "s_nop 1",
      "s_or_b64 s[56:57], s[56:57], s[58:59]", "s_or_b64 s[56:57], s[56:57], vcc", f"v_cmp_ne_u32 vcc, {NONCE}, v245", "s_nop 1", "s_or_b64 s[56:57], s[56:57], vcc",
      "s_mov_b64 exec, -1", f"v_cmp_ne_u32 vcc, {NONCE}, v246", "s_nop 1", "s_or_b64 s[56:57], s[56:57], vcc",
      "s_cmp_eq_u64 s[56:57], 0", "s_cbranch_scc1 K2_epd", "s_add_u32 s62, s62, 1", f"s_cmp_ge_u32 s62, {SPIN}", "s_cbranch_scc1 K2_epd")
    e(f"s_mov_b32 s56, {FL_H}", "v_lshl_add_u32 v5, v0, 4, s56")
    for n in range(4): e(f"global_load_dword v{242+n}, v5, s[86:87] offset:{1024*n} sc1")
    e(f"global_load_dword v246, v{PU}, s[86:87] sc1", "s_branch K2_ep")
    a.lab("K2_epd")
    e(f"v_mov_b32 v5, {EPO}", f"v_mov_b32 v6, {NONCE}", "s_mov_b64 exec, 1", "global_store_dword v5, v6, s[86:87] sc1")
    a.lab("K2_fin")
    stamp_out(a)
```

```python
import sys
from asmlib import *
import gen
from gen import KN, LOG2E, LN2, H_OFF, H_SZ, U_OFF, U_SZ, X_SZ, W1_SZ, WD_SZ, W2_SZ, SRD3, HEADER, stats_code, lane_masks
W2T_OFF = 0x900000; W2T_SZ = 8*245760
FL = 0xB00000; FL_H = FL; FL_U = FL + 4096; FL_W = FL + 8192; EPO = FL + 16384
SPIN = 200000
STAMP = False
OPT = set()
NONCE = "s65"
def stamp(a, lane, rt=False):
    if STAMP: a.e(f"s_mem{'real' if rt else ''}time s[66:67]", "s_waitcnt lgkmcnt(0)", f"v_writelane_b32 v255, s66, {lane}")
def stamp_out(a):
    if not STAMP: return
    e = a.e
    e("s_waitcnt vmcnt(0)")
    stamp(a, 15); stamp(a, 31, True)
    e("s_lshl_b32 s96, s2, 9", "s_lshl_b32 s97, s24, 7", "s_add_u32 s96, s96, s97", "s_add_u32 s96, s96, 0xF00000")
    e("s_mov_b64 exec, 0xffffffff", "v_lshlrev_b32 v4, 2, v0", "v_add_u32 v4, s96, v4")
    e("global_store_dword v4, v255, s[86:87]", "s_waitcnt vmcnt(0)")

def merge(main, fill, every, start=0):
    out = []; fi = 0; cnt = 0
    for i, m in enumerate(main):
        out.append(m)
        if i >= start:
            cnt += 1
            if cnt >= every and fi < len(fill):
                out += fill[fi]; fi += 1; cnt = 0
    return out, fill[fi:]

class W2L:
    def __init__(s, R): s.n = 0; s.R = R
    def nxt(s):
        n = s.n; s.n += 1
        g = [f"buffer_load_dwordx4 {ar(4*n,4)}, v{s.R}, s[16:19], s94 offen offset:{1024*(n&3)} sc1"]
        if (n & 3) == 3: g.append(f"v_add_u32 v{s.R}, 4096, v{s.R}")
        return g
    def take(s, k): return [s.nxt() for _ in range(min(k, 60 - s.n))]

def k1_half(mf, rd, pre=(), upd=(), groups=(), tail=()):
    n = len(mf); plan = {}
    for i, r in enumerate(rd): plan.setdefault(i, []).append(r)
    for i, p in enumerate(pre): plan.setdefault(i, []).append(p)
    idx = len(rd); ui = 0
    while ui < len(upd):
        j = min(idx, n-1)
        for _ in range(3):
            if ui < len(upd): plan.setdefault(j, []).append(upd[ui]); ui += 1
        idx += 1
    ng = len(groups)
    for gi, g in enumerate(groups):
        j = 1 + (gi * (n-3)) // max(ng, 1)
        plan.setdefault(j, []).extend(g)
    for i, t in enumerate(tail): plan.setdefault(n-2 if i < len(tail)-1 else n-1, []).append(t)
    return slots_merge(mf, plan)

def spin_check(a, name, ld, cmpreg, maskset):
    pass

PAR = {'G1': [5,5,5,5,5,27,11,8], 'DF': [5,5,5,5,5,27,7,8]}
def k1_main(a, name, slot, mf0, mf1, rd1, rd0, addr_regs, dma_groups, nd, soffw_inc, w2l, WP, mf0z, dma_st):
    e = a.e
    updc = [f"v_add_u32 v{r}, {slot}, v{r}" for r in addr_regs]
    e(*k1_half(mf0z, rd1, upd=updc, groups=dma_st(2)))
    if name == "G1":
        e("s_cmp_ge_u32 s3, 120", "s_cbranch_scc1 G1_w0a", f"s_waitcnt vmcnt({nd+4}) lgkmcnt(0)", "s_branch G1_w0b")
        a.lab("G1_w0a")
        e(f"s_waitcnt vmcnt({nd}) lgkmcnt(0)")
        a.lab("G1_w0b")
    else:
        e(f"s_waitcnt vmcnt({nd}) lgkmcnt(0)")
    e("s_barrier")
    e(*k1_half(mf1, rd0, groups=dma_st(3)))
    e("s_waitcnt lgkmcnt(0)")
    e(*k1_half(mf0, rd1, upd=updc, groups=dma_st(4)))
    e(f"s_waitcnt vmcnt({2*nd}) lgkmcnt(0)")
    e("s_barrier")
    e(*k1_half(mf1, rd0, groups=dma_st(5)))
    e("s_waitcnt lgkmcnt(0)")
    e("s_mov_b32 s27, 2", f"s_mov_b32 s64, {slot}")
    e(".p2align 5")
    a.lab(f"{name}_loop")
    pre = ["s_and_b32 s33, s27, 3", f"s_mul_i32 s30, s33, {slot}", "s_cmp_eq_u32 s33, 3", f"s_cselect_b32 s32, {-3*slot}, s64"]
    upd = [f"v_add_u32 v{r}, s32, v{r}" for r in addr_regs]
    e(*k1_half(mf0, rd1, pre=pre, upd=upd))
    e(f"s_waitcnt vmcnt({2*nd}) lgkmcnt(0)")
    e("s_barrier")
    if name == "G1":
        e("s_cmp_eq_u32 s27, s92", "s_cbranch_scc1 G1_sig")
        a.lab("G1_sigd")
    tail = ["s_add_u32 s28, s28, 128"] + ([f"s_add_u32 s29, s29, {soffw_inc}"] if soffw_inc else []) + ["s_add_u32 s27, s27, 1", "s_cmp_lt_u32 s27, 6"]
    e(*k1_half(mf1, rd0, groups=dma_groups, tail=tail))
    e("s_waitcnt lgkmcnt(0)")
    e(f"s_cbranch_scc1 {name}_loop")
    pa, pd = WP
    for s in range(6, 10):
        d = -3*slot if (s & 3) == 3 else slot
        upd = [f"v_add_u32 v{r}, {d}, v{r}" for r in addr_regs] if s < 9 else []
        cnt = PAR[name]
        g0 = w2l.take(cnt[2*(s-8)+1]) if s >= 8 else []
        e(*k1_half(mf0, rd1, upd=upd, groups=g0))
        if s == 6: e(f"s_waitcnt vmcnt({2*nd}) lgkmcnt(0)")
        elif s == 7: e("s_waitcnt vmcnt(0) lgkmcnt(0)")
        elif s == 8: e("s_waitcnt lgkmcnt(0)")
        else: e("s_waitcnt lgkmcnt(0)")
        if s < 9 or True: e("s_barrier")
        g1 = []
        if s == 6:
            g1 = [["s_mov_b64 exec, 0x3fffffff", f"global_load_dword v{pd}, v{pa}, s[86:87] sc1", "s_mov_b64 exec, -1"]]
        if s == 7:
            e("s_mov_b64 exec, 0x3fffffff", f"v_cmp_ne_u32 vcc, {NONCE}, v{pd}", "s_mov_b64 exec, -1", "s_nop 2", "s_cbranch_vccnz " + f"{name}_wsp")
            a.lab(f"{name}_wok")
        if s >= 7: g1 = w2l.take(cnt[2*(s-7)])
        e(*k1_half(mf1, rd0 if s < 9 else [], groups=g1))
        if s < 9: e("s_waitcnt lgkmcnt(0)")
    def ool(b):
        ee = b.e
        b.lab(f"{name}_wsp")
        ee("s_mov_b32 s62, 0", "s_mov_b64 exec, 0x3fffffff")
        b.lab(f"{name}_wsp1")
        ee(f"global_load_dword v{pd}, v{pa}, s[86:87] sc1", "s_waitcnt vmcnt(0)", f"v_cmp_ne_u32 vcc, {NONCE}, v{pd}", "s_add_u32 s62, s62, 1", "s_nop 1",
           f"s_cbranch_vccz {name}_wsp2", f"s_cmp_lt_u32 s62, {SPIN}", f"s_cbranch_scc1 {name}_wsp1")
        b.lab(f"{name}_wsp2")
        ee("s_mov_b64 exec, -1", f"s_branch {name}_wok")
    return ool

def gen_f(a):
    e = a.e
    ools = []
    e("s_cmp_ge_u32 s2, 256", "s_cbranch_scc1 F_end")
    e("s_load_dwordx16 s[36:51], s[0:1], 0")
    e("s_load_dwordx2 s[86:87], s[0:1], 80")
    e("s_load_dwordx2 s[20:21], s[0:1], 64")
    if STAMP: e("v_mov_b32 v255, 0")
    stamp(a, 30, True); stamp(a, 0)
    e("v_lshrrev_b32 v1, 6, v0", "v_and_b32 v0, 63, v0")
    e("v_readfirstlane_b32 s24, v1")
    if 'nopf' not in OPT:
        e("s_getpc_b64 s[96:97]")
        a.lab("F_pc")
        e("s_lshr_b32 s56, s2, 3", "s_lshl_b32 s57, s24, 5", "s_add_u32 s56, s56, s57", "s_lshl_b32 s56, s56, 10",
          "s_cmp_lt_u32 s56, F_codeend-F_pc-1024", "s_cbranch_scc0 F_nopf",
          "v_lshl_add_u32 v5, v0, 4, s56", "global_load_dwordx4 v[196:199], v5, s[96:97]")
        a.lab("F_nopf")
    e("s_and_b32 s88, s2, 7", "s_lshr_b32 s89, s2, 3", "s_lshr_b32 s56, s88, 1", "s_lshl_b32 s56, s56, 2",
      "s_and_b32 s57, s89, 3", "s_add_u32 s25, s56, s57", "s_lshr_b32 s58, s89, 2", "s_and_b32 s59, s88, 1")
    e("s_lshl_b32 s56, s56, 1", "s_and_b32 s57, s89, 7", "s_add_u32 s90, s56, s57",
      "s_lshl_b32 s56, s59, 2", "s_lshr_b32 s57, s89, 3", "s_add_u32 s91, s56, s57")
    e("v_and_b32 v1, 15, v0", "v_lshrrev_b32 v2, 4, v0", "v_lshrrev_b32 v3, 3, v0", "v_and_b32 v4, 7, v0")
    e(f"s_mov_b32 s6, {X_SZ}", f"s_mov_b32 s7, {SRD3}", f"s_mov_b32 s11, {SRD3}", f"s_mov_b32 s15, {SRD3}", f"s_mov_b32 s19, {SRD3}",
      f"s_mov_b32 s22, {X_SZ}", f"s_mov_b32 s23, {SRD3}")
    e("s_lshl_b32 s60, s25, 2", "s_add_u32 s60, s60, s24", "s_mul_i32 s61, s60, 1280", "s_lshl_b32 s34, s24, 12")
    e("s_mul_i32 s94, s91, 245760", "s_mul_i32 s56, s24, 61440", "s_add_u32 s94, s94, s56")
    e(f"v_mov_b32 v27, {EPO}")
    e("s_sub_u32 s3, s2, 64")
    if 'dff' in OPT:
        e("s_cmp_ge_u32 s58, 2", "s_cbranch_scc1 K1_g1")
        g1_i0 = len(a.L)
        a.lab("K1_g1")
    else:
        e("s_cmp_lt_u32 s58, 2", "s_cbranch_scc1 K1_dft")
    XV, WV, WA, XA0, XA1 = 8, 12, 16, 24, 25
    NV, W2R, PA, PD = 26, 254, 29, 30
    ACC, CS, SUM, SQ, ONES = 32, 96, 104, 112, 120
    A0, B0, A1, B1 = 124, 156, 164, 196
    T = 204
    PF, PL, PG, PW, PR = 164, 180, 204+16, 204+17, 204+18
    e("s_mul_i32 s26, s59, 6", "s_add_u32 s26, s26, s58", "s_sub_u32 s26, s26, 2")
    e("v_xor_b32 v5, v4, v2", "v_lshlrev_b32 v5, 4, v5")
    e("v_mov_b32 v7, 81920", "v_mul_u32_u24 v6, v7, v3")
    e("v_add3_u32 v6, v6, v5, s61")
    e(f"v_mov_b32 v{XV}, v6")
    e(f"v_xor_b32 v7, 64, v6")
    e(f"v_add_u32 v{XV+1}, {8*81920-1024}, v7")
    e(f"v_add_u32 v{XV+2}, {16*81920-2048}, v6")
    e(f"v_add_u32 v{XV+3}, {24*81920-3072}, v7")
    e("s_lshl_b32 s62, s24, 4", "v_add_u32 v5, s62, v2", "v_mul_u32_u24 v5, 3072, v5")
    e("v_lshlrev_b32 v6, 1, v2", "v_xor_b32 v6, v6, v1", "v_lshlrev_b32 v6, 4, v6")
    e("s_lshl_b32 s62, s26, 8", "v_add3_u32 v5, v5, v6, s62")
    e(f"v_mov_b32 v{WV}, v5", "v_xor_b32 v6, 128, v5")
    e(f"v_add_u32 v{WV+1}, {8*3072-1024}, v6")
    e(f"v_add_u32 v{WV+2}, {4*3072-2048}, v5")
    e(f"v_add_u32 v{WV+3}, {12*3072-3072}, v6")
    e("s_mul_i32 s56, s3, 2185", "s_lshr_b32 s56, s56, 16")
    e("s_mul_i32 s57, s56, 30", "s_sub_u32 s57, s3, s57")
    e("s_lshl_b32 s93, s56, 9", "s_lshl_b32 s62, s57, 4", "s_add_u32 s93, s93, s62", f"s_add_u32 s93, s93, {FL_W}")
    e("s_lshl_b32 s57, s57, 2", "s_add_u32 s57, s57, s24")
    e("s_mul_i32 s62, s57, 13108", "s_lshr_b32 s62, s62, 16")
    e("s_mul_i32 s63, s62, 5", "s_sub_u32 s63, s57, s63")
    e("s_mul_i32 s95, s62, 81920", "s_mul_i32 s57, s56, 320", "s_add_u32 s95, s95, s57", "s_lshl_b32 s57, s63, 6", "s_add_u32 s95, s95, s57")
    e("s_mul_i32 s56, s56, 491520", "s_mul_i32 s62, s62, 10240", "s_add_u32 s56, s56, s62")
    e("s_lshl_b32 s63, s63, 11")
    e(f"s_add_u32 s57, s63, {245760-5120}", "s_cmp_ge_u32 s63, 5120", "s_cselect_b32 s98, s57, s63", "s_add_u32 s98, s98, s56")
    e("s_add_u32 s63, s63, 1024", f"s_add_u32 s57, s63, {245760-5120}", "s_cmp_ge_u32 s63, 5120", "s_cselect_b32 s99, s57, s63", "s_add_u32 s99, s99, s56")
    e(f"v_lshrrev_b32 v5, 2, v0", "v_and_b32 v6, 3, v0", "v_mul_u32_u24 v7, 1280, v5", f"v_lshl_add_u32 v{PG}, v6, 4, v7")
    e("s_cmp_lt_u32 s3, 120", "s_cselect_b32 s92, 2, 99", "s_cmp_eq_u32 s24, 0", "s_cselect_b32 s92, s92, 99")
    e("s_waitcnt lgkmcnt(0)")
    stamp(a, 1)
    e("global_load_dword v26, v27, s[86:87] sc1")
    e("s_mov_b32 s4, s36", "s_mov_b32 s5, s37", "s_mov_b32 s8, s48", "s_mov_b32 s9, s49", f"s_mov_b32 s10, {W1_SZ}")
    e("s_mov_b32 s16, s50", "s_mov_b32 s17, s51", f"s_mov_b32 s18, {W2_SZ}")
    e("s_cmp_ge_u32 s3, 120", "s_cbranch_scc1 G1_nopre1")
    for n in range(4):
        e(f"buffer_load_dwordx4 {vr(PL+4*n,4)}, v{PG}, s[16:19], s95 offen")
        if n < 3: e("s_add_u32 s95, s95, 20480")
    a.lab("G1_nopre1")
    def g1_dma(m0x, m0w):
        g = []
        g.append([f"s_add_u32 m0, {m0x[0]}, {m0x[1]}", "s_nop 0", f"buffer_load_dwordx4 v{XV}, s[4:7], s28 offen lds"])
        for j in range(1, 4): g.append([f"buffer_load_dwordx4 v{XV+j}, s[4:7], s28 offen offset:{1024*j} lds"])
        g.append([f"s_add_u32 m0, {m0w[0]}, {m0w[1]}", "s_nop 0", f"buffer_load_dwordx4 v{WV}, s[8:11], s29 offen lds"])
        for j in range(1, 4): g.append([f"buffer_load_dwordx4 v{WV+j}, s[8:11], s29 offen offset:{1024*j} lds"])
        return g
    e("s_mov_b32 s28, 0", "s_mov_b32 s29, 0", "s_add_u32 s35, s34, 16384")
    def g1_st(st):
        gs = g1_dma(("s34", (st&3)*32768), ("s35", (st&3)*32768))
        gs[-1] = gs[-1] + ["s_add_u32 s28, s28, 128", "s_add_u32 s29, s29, 196608"]
        return gs
    dm = g1_st(0) + g1_st(1)
    S = A(); se = S.e
    se(f"v_lshrrev_b32 v5, 1, v1", "v_xor_b32 v5, v5, v2", "v_lshlrev_b32 v5, 4, v5")
    se(f"v_lshl_add_u32 v5, v1, 7, v5", f"v_add_u32 v{XA0}, s34, v5", f"v_xor_b32 v{XA1}, 64, v{XA0}")
    se("v_lshrrev_b32 v5, 2, v1", "v_and_b32 v6, 1, v2", "v_lshl_add_u32 v5, v6, 2, v5")
    se("v_lshrrev_b32 v6, 1, v2", "v_lshl_add_u32 v6, v6, 4, v5")
    se("v_lshlrev_b32 v6, 8, v6", "v_and_b32 v7, 3, v1", "v_lshl_add_u32 v6, v7, 3, v6", "v_add_u32 v6, 16384, v6")
    for t in range(8):
        se("s_lshl_b32 s62, s24, 1", f"s_add_u32 s62, s62, {t}", "s_and_b32 s62, s62, 7",
           "v_xor_b32 v7, s62, v5", f"v_lshl_add_u32 v{WA+t}, v7, 5, v6")
    lane_masks(S, T)
    for r in range(ONES, ONES+4): se(f"v_mov_b32 v{r}, 0x3f803f80")
    common_setup(S, W2R, PA, PW, PR)
    L = S.L; k = (len(L) + len(dm) - 5) // (len(dm) - 4)
    pos = 0
    for gi, g in enumerate(dm):
        e(*g)
        if gi >= 4:
            e(*L[pos:pos+k]); pos += k
    e(*L[pos:])
    stamp(a, 2)
    e("s_waitcnt vmcnt(16)")
    nonce_calc(a, 26)
    e("s_mov_b32 s16, s86", "s_mov_b32 s17, s87", f"s_add_u32 s16, s16, {W2T_OFF}", "s_addc_u32 s17, s17, 0", f"s_mov_b32 s18, {W2T_SZ}")
    e("s_cmp_ge_u32 s3, 120", "s_cbranch_scc1 G1_nopre2")
    for n in range(4): e(f"ds_write_b128 v{PW}, {vr(PL+4*n,4)} offset:{16*80*n}")
    for k2 in range(2):
        for nt in range(2):
            for hf in range(2):
                e(f"ds_read_b64_tr_b16 {vr(PF+8*k2+4*nt+2*hf,2)}, v{PR} offset:{k2*32*80+hf*16*80+nt*32}")
    e("v_lshlrev_b32 v5, 4, v0", "s_waitcnt lgkmcnt(0)")
    for k2 in range(2):
        for nt in range(2):
            e(f"buffer_store_dwordx4 {vr(PF+8*k2+4*nt,4)}, v5, s[16:19], s{98+nt} offen offset:{0} sc1" if k2 == 0 else
              f"buffer_store_dwordx4 {vr(PF+8*k2+4*nt,4)}, v5, s[16:19], s{98+nt} offen offset:{0} sc1")
        if k2 == 0: e("s_add_u32 s98, s98, 5120", "s_add_u32 s99, s99, 5120")
    e("s_waitcnt vmcnt(12)", "s_branch G1_pre_done")
    a.lab("G1_nopre2")
    e("s_waitcnt vmcnt(8)")
    a.lab("G1_pre_done")
    def g1_mf(Ab, Bb, mfma=mfma):
        m = []
        for t in range(8):
            for mt in range(2): m.append(mfma(ACC + (t*2+mt)*4, Ab + 4*t, Bb + 4*mt))
            if t < 2: m.append(mfma(CS + 4*t, Ab + 4*t, ONES))
            if t in (2, 3): m.append(mfma(SUM + 4*(t-2), ONES, Bb + 4*(t-2)))
            if t in (4, 5): m.append(mfma(SQ + 4*(t-4), Bb + 4*(t-4), Bb + 4*(t-4)))
        return m
    def g1_rd(Ab, Bb, xa, kk):
        r = []
        for mt in range(2): r.append(f"ds_read_b128 {vr(Bb+4*mt,4)}, v{xa} offset:{2048*mt}")
        for t in range(8):
            for hf in range(2): r.append(f"ds_read_b64_tr_b16 {vr(Ab+4*t+2*hf,2)}, v{WA+t} offset:{kk*8192+hf*2048}")
        return r
    e("s_barrier")
    stamp(a, 3)
    e(*g1_rd(A0, B0, XA0, 0))
    e("s_waitcnt lgkmcnt(0)")
    w2l = W2L(W2R)
    ool = k1_main(a, "G1", 32768, g1_mf(A0, B0), g1_mf(A1, B1), g1_rd(A1, B1, XA1, 1), g1_rd(A0, B0, XA0, 0),
            [WA+t for t in range(8)] + [XA0, XA1], g1_dma(("s30", "s34"), ("s30", "s35")), 8, 196608, w2l, (PA, PD), g1_mf(A0, B0, mfma0), g1_st)
    ools.append(ool)
    def sig(b):
        b.lab("G1_sig")
        b.e("v_mov_b32 v5, s93", f"v_mov_b32 v6, {NONCE}", "s_mov_b64 exec, 1", "global_store_dword v5, v6, s[86:87] sc1", "s_mov_b64 exec, -1", "s_branch G1_sigd")
    ools.append(sig)
    stamp(a, 4)
    E = A(); ee = E.e
    ee("s_nop 7", "s_nop 7")
    ee("s_lshl_b32 s62, s24, 7", "s_add_u32 s62, s62, 131072")
    ee(f"v_lshl_add_u32 v5, v2, 4, s62")
    ee(f"ds_write_b128 v5, {vr(CS,4)}", f"ds_write_b128 v5, {vr(CS+4,4)} offset:64")
    MB, RS = [T+12, T+13], [T+14, T+15]
    stats_code(E, [SUM, SUM+4], [SQ, SQ+4], T, [(MB[0], RS[0]), (MB[1], RS[1])])
    for mt in range(2): ee(f"v_mul_f32 v{RS[mt]}, {fhex(-LOG2E)}, v{RS[mt]}")
    ee("s_waitcnt lgkmcnt(0)", "s_barrier")
    stamp(E, 11)
    CSR = A0
    for t in range(8):
        ee("s_lshl_b32 s62, s24, 1", f"s_add_u32 s62, s62, {t}", "s_and_b32 s62, s62, 7", "s_lshl_b32 s62, s62, 6", "s_add_u32 s62, s62, 131072",
           f"v_lshl_add_u32 v5, v2, 4, s62", f"ds_read_b128 {vr(CSR+4*t,4)}, v5")
    ee("s_mov_b32 s12, s86", "s_mov_b32 s13, s87", f"s_mov_b32 s14, {H_SZ}")
    ee("s_and_b32 s62, s60, 31", "s_mul_i32 s62, s62, 48", "s_lshl_b32 s63, s26, 2", "s_add_u32 s62, s62, s63", "s_lshl_b32 s62, s62, 2",
       "s_lshr_b32 s63, s25, 3", "s_lshl_b32 s63, s63, 1", "s_add_u32 s62, s62, s63", "s_lshl_b32 s62, s62, 10")
    ee("v_lshlrev_b32 v6, 4, v0")
    ee("s_waitcnt lgkmcnt(0)")
    TT = A1
    stamp(E, 12)
    for u in range(4):
        ee(f"s_add_u32 s63, s24, {u}", "s_and_b32 s63, s63, 3", "s_lshl_b32 s63, s63, 12", "s_add_u32 s63, s63, s62")
        for mt in range(2):
            tb = TT + ((u*2+mt) & 1) * 20
            z = tb; ex = tb + 8; pk = tb + 16
            vals = [(ACC + ((2*u+h)*2+mt)*4 + r, CSR + (2*u+h)*4 + r) for h in range(2) for r in range(4)]
            for k, (ac, cs) in enumerate(vals): ee(f"v_fma_f32 v{z+k}, -v{MB[mt]}, v{cs}, v{ac}")
            for k in range(0, 8, 2): ee(f"v_pk_mul_f32 {vr(z+k,2)}, {vr(z+k,2)}, {vr(RS[mt]&~1,2)} op_sel:[0,{RS[mt]&1}] op_sel_hi:[1,{RS[mt]&1}]")
            for k in range(8): ee(f"v_exp_f32 v{ex+k}, v{z+k}")
            for k in range(0, 8, 2): ee(f"v_pk_add_f32 {vr(ex+k,2)}, {vr(ex+k,2)}, 1.0 op_sel_hi:[1,0]")
            for k in range(8): ee(f"v_rcp_f32 v{ex+k}, v{ex+k}")
            for k in range(0, 8, 2): ee(f"v_pk_mul_f32 {vr(z+k,2)}, {vr(z+k,2)}, {vr(ex+k,2)}")
            for k in range(4): ee(f"v_cvt_pk_bf16_f32 v{pk+k}, v{z+2*k}, v{z+2*k+1}")
            ee(f"buffer_store_dwordx4 {vr(pk,4)}, v6, s[12:15], s63 offen offset:{1024*mt} sc1")
    out, left = merge_safe(E.L, w2l.take(PAR['G1'][5]), PAR['G1'][6], start=4)
    e(*out)
    for g in left: e(*g)
    stamp(a, 5)
    rest = w2l.take(60)
    e("s_mul_i32 s56, s26, 22", "s_lshr_b32 s56, s56, 6", "s_mul_i32 s57, s56, 3", "s_sub_u32 s57, s26, s57", "s_lshl_b32 s57, s57, 1",
      "s_lshr_b32 s62, s25, 3", "s_add_u32 s57, s57, s62", "s_lshl_b32 s57, s57, 4", "s_lshl_b32 s56, s56, 7", "s_add_u32 s57, s57, s56",
      "s_and_b32 s56, s25, 7", "s_lshl_b32 s56, s56, 9", "s_add_u32 s57, s57, s56", f"s_add_u32 s93, s57, {FL_H}")
    publish(a, "G1", rest, PAR['G1'][7])
    e("s_branch K2_start")
    if 'dff' in OPT:
        g1_code = a.L[g1_i0:]; del a.L[g1_i0:]
    a.lab("K1_dft")
    XV, DV, XA0, XA1, BA0, BA1 = 8, 12, 17, 18, 19, 20
    NV, W2R, PA, PD = 26, 28, 29, 30
    ACC, SUM, SQ, ONES = 32-8, 104, 112, 120
    ACC = 24
    W2R, PA, PD = 254, 253, 252
    A0, B0, A1, B1 = 124, 132, 172, 180
    WC = 220
    e("s_lshl_b32 s26, s59, 1", "s_add_u32 s26, s26, s58")
    e("v_xor_b32 v5, v4, v2", "v_lshlrev_b32 v5, 4, v5")
    e("v_lshrrev_b32 v6, 2, v3", "v_and_b32 v7, 3, v3", "v_lshl_add_u32 v6, v6, 3, v7")
    e("v_mov_b32 v7, 81920", "v_mul_u32_u24 v6, v7, v6")
    e("v_add3_u32 v6, v6, v5, s61")
    e(f"v_mov_b32 v{XV}, v6", "v_xor_b32 v7, 64, v6")
    e(f"v_add_u32 v{XV+1}, {16*81920-1024}, v7")
    e(f"v_add_u32 v{XV+2}, {4*81920-2048}, v6")
    e(f"v_add_u32 v{XV+3}, {20*81920-3072}, v7")
    e("s_and_b32 s62, s24, 1", "s_lshl_b32 s63, s62, 2", "v_add_u32 v5, s63, v2", "v_xor_b32 v5, v5, v4", "v_lshlrev_b32 v5, 4, v5")
    e("s_mul_i32 s63, s26, 80", "s_lshl_b32 s62, s62, 3", "s_add_u32 s63, s63, s62", "v_add_u32 v6, s63, v3")
    e("v_mov_b32 v7, 1280", "v_mad_u32_u24 v21, v6, v7, v5")
    for j in range(1, 5): e(f"v_add_u32 v{DV+j}, {16*1280*j - (1024*j if j < 4 else 0)}, v21")
    e("v_cmp_eq_u32 vcc, 0, v6", f"v_add_u32 v22, {320*1280}, v21", "s_nop 0", f"v_cndmask_b32 v{DV}, v21, v22, vcc")
    e("v_lshlrev_b32 v5, 18, v1", "v_lshl_add_u32 v5, v2, 4, v5", f"v_add_u32 v6, {16*262144}, v5")
    e("s_mov_b32 s28, 0", "s_mul_i32 s35, s24, 5120", "s_add_u32 s35, s35, 16384")
    e("s_waitcnt lgkmcnt(0)")
    stamp(a, 1)
    e("global_load_dword v23, v27, s[86:87] sc1")
    e("s_mov_b32 s4, s36", "s_mov_b32 s5, s37")
    e("s_cmp_ge_u32 s24, 2", "s_cselect_b32 s8, s44, s42", "s_cselect_b32 s9, s45, s43", f"s_mov_b32 s10, {WD_SZ}")
    def dft_dma(base0, base1):
        g = []
        g.append([f"s_add_u32 m0, {base0[0]}, {base0[1]}", "s_nop 0", f"buffer_load_dwordx4 v{XV}, s[4:7], s28 offen lds"])
        for j in range(1, 4): g.append([f"buffer_load_dwordx4 v{XV+j}, s[4:7], s28 offen offset:{1024*j} lds"])
        g.append([f"s_add_u32 m0, {base1[0]}, {base1[1]}", "s_nop 0", f"buffer_load_dwordx4 v{DV}, s[8:11], s28 offen lds"])
        for j in range(1, 4): g.append([f"buffer_load_dwordx4 v{DV+j}, s[8:11], s28 offen offset:{1024*j} lds"])
        g.append(["s_add_u32 m0, m0, 4096", "s_nop 0", f"buffer_load_dwordx4 v{DV+4}, s[8:11], s28 offen lds"])
        return g
    def dft_st(st):
        gs = dft_dma(("s34", (st&3)*36864), ("s35", (st&3)*36864))
        gs[-1] = gs[-1] + ["s_add_u32 s28, s28, 128"]
        return gs
    dm = dft_st(0)
    dm.append([f"global_load_dwordx4 {vr(WC,4)}, v5, s[38:39]", f"global_load_dwordx4 {vr(WC+4,4)}, v6, s[38:39]",
               f"global_load_dwordx4 {vr(WC+8,4)}, v5, s[40:41]", f"global_load_dwordx4 {vr(WC+12,4)}, v6, s[40:41]"])
    dm += dft_st(1)
    T = 236
    S = A(); se = S.e
    se(f"v_lshrrev_b32 v7, 1, v1", "v_xor_b32 v7, v7, v2", "v_lshlrev_b32 v7, 4, v7")
    se(f"v_lshl_add_u32 v21, v1, 7, v7", f"v_add_u32 v{XA0}, s34, v21", f"v_xor_b32 v{XA1}, 64, v{XA0}")
    se("v_lshrrev_b32 v21, 3, v1", "v_mul_u32_u24 v21, 5120, v21", "v_and_b32 v22, 7, v1", "v_lshl_add_u32 v21, v22, 7, v21")
    se(f"v_add_u32 v21, v21, v7", f"v_add_u32 v{BA0}, 16384, v21", f"v_xor_b32 v{BA1}, 64, v{BA0}")
    for r in range(ONES, ONES+4): se(f"v_mov_b32 v{r}, 0x3f803f80")
    lane_masks(S, T)
    common_setup(S, W2R, PA, None, None)
    L = S.L; k = (len(L) + len(dm) - 11) // (len(dm) - 10)
    pos = 0
    for gi, g in enumerate(dm):
        e(*g)
        if gi >= 10:
            e(*L[pos:pos+k]); pos += k
    e(*L[pos:])
    stamp(a, 2)
    e("s_waitcnt vmcnt(13)")
    nonce_calc(a, 23)
    e("s_mov_b32 s16, s86", "s_mov_b32 s17, s87", f"s_add_u32 s16, s16, {W2T_OFF}", "s_addc_u32 s17, s17, 0", f"s_mov_b32 s18, {W2T_SZ}")
    def dacc(p, part, mt): return ACC + ((p*2+part)*2+mt)*4
    def dft_mf(Ab, Bb, mfma=mfma):
        m = []
        for p in range(5):
            for part in range(2):
                for mt in range(2): m.append(mfma(dacc(p, part, mt), Ab + 4*mt, Bb + (part*5+p)*4))
            if p < 2: m.append(mfma(SUM + 4*p, ONES, Ab + 4*p))
            if p in (2, 3): m.append(mfma(SQ + 4*(p-2), Ab + 4*(p-2), Ab + 4*(p-2)))
        return m
    def dft_rd(Ab, Bb, xa, ba):
        r = []
        for mt in range(2): r.append(f"ds_read_b128 {vr(Ab+4*mt,4)}, v{xa} offset:{2048*mt}")
        for p in range(5):
            for part in range(2): r.append(f"ds_read_b128 {vr(Bb+(part*5+p)*4,4)}, v{ba} offset:{part*10240+p*1024}")
        return r
    e("s_barrier")
    stamp(a, 3)
    e(*dft_rd(A0, B0, XA0, BA0))
    e("s_waitcnt lgkmcnt(0)")
    w2l = W2L(W2R)
    ool = k1_main(a, "DF", 36864, dft_mf(A0, B0), dft_mf(A1, B1), dft_rd(A1, B1, XA1, BA1), dft_rd(A0, B0, XA0, BA0),
            [XA0, XA1, BA0, BA1], dft_dma(("s30", "s34"), ("s30", "s35")), 9, 0, w2l, (PA, PD), dft_mf(A0, B0, mfma0), dft_st)
    ools.append(ool)
    stamp(a, 4)
    E = A(); ee = E.e
    ee("s_nop 7", "s_nop 7")
    MB, RS = [T+12, T+13], [T+14, T+15]
    stats_code(E, [SUM, SUM+4], [SQ, SQ+4], T, [(MB[0], RS[0]), (MB[1], RS[1])])
    RR = A0
    ee("v_lshlrev_b32 v5, 4, v2")
    for mt in range(2):
        for r in range(4): ee(f"v_add_u32 v6, {4*r}, v5", f"ds_bpermute_b32 v{RR+mt*4+r}, v6, v{RS[mt]}")
    for k in range(8): ee(f"v_xor_b32 v{WC+16+k}, 0x80008000, v{WC+8+k}")
    ee("s_waitcnt lgkmcnt(0)")
    stamp(E, 11)
    PK = B0
    for p in range(5):
        for part in range(2):
            for mt in range(2):
                ac = dacc(p, part, mt)
                for r in range(0, 4, 2): ee(f"v_pk_mul_f32 {vr(ac+r,2)}, {vr(ac+r,2)}, {vr(RR+mt*4+r,2)}")
            for mt in range(2):
                ac = dacc(p, part, mt)
                for h in range(2): ee(f"v_cvt_pk_bf16_f32 v{PK+8*p+4*part+2*mt+h}, v{ac+2*h}, v{ac+2*h+1}")
    ee("s_nop 1")
    def ud(p, nt, c): return ACC + p*16 + nt*8 + 4*c
    mm = []
    for p in range(5):
        aa, bb = PK+8*p, PK+8*p+4
        for nt in range(2):
            mm.append(mfma0(ud(p, nt, 0), aa, WC + 4*nt)); mm.append(mfma0(ud(p, nt, 1), aa, WC + 8 + 4*nt))
        for nt in range(2):
            mm.append(mfma(ud(p, nt, 0), bb, WC + 16 + 4*nt)); mm.append(mfma(ud(p, nt, 1), bb, WC + 4*nt))
    LA, GA = B1, B1 + 10
    ee("s_movk_i32 s56, 1296", "s_mov_b32 s57, 81920", "s_lshl_b32 s63, s24, 3")
    ad = []
    for i in range(10):
        ad += [[f"v_add_u32 v5, {64*i}, v0", "v_mul_u32_u24 v6, 205, v5"], ["v_lshrrev_b32 v6, 14, v6", "v_mul_u32_u24 v7, 80, v6"],
               ["v_sub_u32 v5, v5, v7", "v_lshlrev_b32 v5, 4, v5", "v_add_u32 v6, s63, v6"],
               [f"v_mad_u32_u24 v{LA+i}, v6, s56, v5", f"v_mad_u32_u24 v{GA+i}, v6, s57, v5"]]
    ee(*interleave(mm, ad, start=0, per=1))
    ee(f"s_mov_b32 s14, {U_SZ}", "s_mov_b32 s12, s86", "s_mov_b32 s13, s87")
    ee(f"s_add_u32 s12, s12, {U_OFF}", "s_addc_u32 s13, s13, 0")
    ee("s_mul_i32 s62, s26, 20480", "s_mul_i32 s63, s25, 1280", "s_add_u32 s62, s62, s63")
    ee("s_mul_i32 s63, s24, 320", "v_mul_u32_u24 v5, 1296, v1", "v_lshl_add_u32 v5, v2, 4, v5", "v_add_u32 v5, s63, v5")
    ee("s_nop 7")
    stamp(E, 12)
    k = 0
    for p in range(5):
        for nt in range(2):
            tb = B1 + 20 + (k % 4) * 4; k += 1
            re, im = ud(p, nt, 0), ud(p, nt, 1)
            ee(f"v_cvt_pk_bf16_f32 v{tb}, v{re}, v{re+1}", f"v_cvt_pk_bf16_f32 v{tb+1}, v{re+2}, v{re+3}",
               f"v_cvt_pk_bf16_f32 v{tb+2}, v{im}, v{im+1}", f"v_cvt_pk_bf16_f32 v{tb+3}, v{im+2}, v{im+3}")
            ee(f"ds_write_b128 v5, {vr(tb,4)} offset:{nt*20736+p*64}")
    ee("s_waitcnt lgkmcnt(0)", "s_barrier")
    for i in range(10): ee(f"ds_read_b128 {vr(PK+4*i,4)}, v{LA+i}")
    for i in range(10):
        ee(f"s_waitcnt lgkmcnt({9-i})", f"buffer_store_dwordx4 {vr(PK+4*i,4)}, v{GA+i}, s[12:15], s62 offen sc1")
    out, left = merge_safe(E.L, w2l.take(PAR['DF'][5]), PAR['DF'][6], start=4)
    e(*out)
    for g in left: e(*g)
    stamp(a, 5)
    rest = w2l.take(60)
    e("s_lshl_b32 s57, s26, 4", "s_add_u32 s57, s57, s25", "s_lshl_b32 s57, s57, 4", f"s_add_u32 s93, s57, {FL_U}")
    publish(a, "DF", rest, PAR['DF'][7])
    a.lab("K2_start")
    from gen2k2 import gen_k2f
    gen_k2f(a, ools, stamp, stamp_out)
    a.lab("F_end")
    e("s_endpgm")
    if 'dff' in OPT: a.L += g1_code
    for o in ools: o(a)
    a.lab("F_codeend")

def merge_safe(main, fill, every, start=0):
    out = []; fi = 0; cnt = 0
    for i, m in enumerate(main):
        out.append(m)
        if i >= start:
            cnt += 1
            nxt = main[i+1] if i+1 < len(main) else ""
            if cnt >= every and fi < len(fill) and not nxt.startswith(("s_addc", "s_cselect", "s_cbranch", "v_cndmask")):
                out += fill[fi]; fi += 1; cnt = 0
    return out, fill[fi:]

def nonce_calc(a, v):
    a.e("s_nop 0", f"v_readfirstlane_b32 {NONCE}, v{v}", "s_nop 3", f"s_mul_i32 {NONCE}, {NONCE}, 0x9E3779B1", f"s_add_u32 {NONCE}, {NONCE}, 0x7F4A7C15")

def common_setup(S, W2R, PA, PW, PR):
    se = S.e
    se(f"v_lshlrev_b32 v{W2R}, 4, v0")
    se("s_lshr_b32 s62, s91, 1", "s_lshl_b32 s62, s62, 9", f"s_add_u32 s62, s62, {FL_W}", f"v_lshl_add_u32 v{PA}, v0, 4, s62")
    if PW is not None:
        se("s_mul_i32 s62, s24, 5120", "s_add_u32 s62, s62, 131072")
        se("v_lshrrev_b32 v7, 2, v0", "v_mul_u32_u24 v7, 80, v7", "v_and_b32 v6, 3, v0", "v_lshl_add_u32 v7, v6, 4, v7", f"v_add_u32 v{PW}, s62, v7")
        se("v_lshrrev_b32 v7, 2, v1", "v_lshl_add_u32 v7, v2, 2, v7", "v_mul_u32_u24 v7, 80, v7", "v_lshl_add_u32 v7, v6, 3, v7", f"v_add_u32 v{PR}, s62, v7")

def publish(a, name, rest, npre):
    e = a.e
    from gen2k2 import k2_setup
    nrest = min(npre, len(rest))
    for g in rest[:nrest]: e(*g)
    import gen2k2
    early_ws = (name == "DF") != ('wsx' in OPT)
    if 'wsa' in OPT: early_ws = True
    k2_setup(a, early_ws)
    stamp(a, 13)
    e(f"s_waitcnt vmcnt({nrest + (8 if early_ws else 0)})")
    stamp(a, 14)
    e("s_barrier")
    stamp(a, 6)
    e("s_cmp_lg_u32 s24, 0", f"s_cbranch_scc1 {name}_pubd")
    e("v_mov_b32 v5, s93", f"v_mov_b32 v6, {NONCE}", "s_mov_b64 exec, 1", "global_store_dword v5, v6, s[86:87] sc1", "s_mov_b64 exec, -1")
    a.lab(f"{name}_pubd")
    if not early_ws: gen2k2.ws_loads(a)
    for g in rest[nrest:]: e(*g)

def build():
    lab = "f_kernel" if 'list' in OPT else KN + "_kernel"
    out = HEADER
    if 'list' in OPT: out += f"; @launch kernel={lab} grid=(256,1,1) block=(256,1,1) lds=160768\n"
    else: out += f"; @launch grid=(256,1,1) block=(256,1,1) lds=160768\n"
    out += '.amdgcn_target "amdgcn-amd-amdhsa--gfx950"\n.text\n'
    a = A(); gen_f(a)
    out += f".globl {lab}\n.p2align 8\n.type {lab},@function\n{lab}:\n" + a.text()
    out += '.section .rodata,"a"\n.p2align 6\n' + gen.kernel_desc(lab, 256, 256, 512)
    return out

if __name__ == "__main__":
    out = sys.argv[1]
    if len(sys.argv) > 2:
        for o in sys.argv[2].split(','):
            if o == 'st': STAMP = True
            elif o.startswith('US='):
                import gen2k2; gen2k2.USTEP = int(o[3:])
            elif o.startswith('G1=') or o.startswith('DF='): PAR[o[:2]] = [int(x) for x in o[3:].split('.')]
            else: OPT.add(o)
    import gen2k2
    gen2k2.OPT = OPT; gen2k2.STAMP = STAMP
    open(out, "w").write(build())
```

```python
import sys
from asmlib import *
import gen
from gen import KN, LOG2E, LN2, H_OFF, H_SZ, U_OFF, U_SZ, X_SZ, W1_SZ, WD_SZ, W2_SZ, SRD3, HEADER, stats_code, lane_masks
W2T_OFF = 0x900000; W2T_SZ = 8*245760
FL = 0xB00000; FL_H = FL; FL_U = FL + 4096; FL_W = FL + 8192; EPO = FL + 16384
SPIN = 200000
STAMP = False
OPT = set()
NONCE = "s65"
def stamp(a, lane, rt=False):
    if STAMP: a.e(f"s_mem{'real' if rt else ''}time s[66:67]", "s_waitcnt lgkmcnt(0)", f"v_writelane_b32 v255, s66, {lane}")
def stamp_out(a):
    if not STAMP: return
    e = a.e
    e("s_waitcnt vmcnt(0)")
    stamp(a, 15); stamp(a, 31, True)
    e("s_lshl_b32 s96, s2, 9", "s_lshl_b32 s97, s24, 7", "s_add_u32 s96, s96, s97", "s_add_u32 s96, s96, 0xF00000")
    e("s_mov_b64 exec, 0xffffffff", "v_lshlrev_b32 v4, 2, v0", "v_add_u32 v4, s96, v4")
    e("global_store_dword v4, v255, s[86:87]", "s_waitcnt vmcnt(0)")

def merge(main, fill, every, start=0):
    out = []; fi = 0; cnt = 0
    for i, m in enumerate(main):
        out.append(m)
        if i >= start:
            cnt += 1
            if cnt >= every and fi < len(fill):
                out += fill[fi]; fi += 1; cnt = 0
    return out, fill[fi:]

class W2L:
    def __init__(s, R): s.n = 0; s.R = R
    def nxt(s):
        n = s.n; s.n += 1
        g = [f"buffer_load_dwordx4 {ar(4*n,4)}, v{s.R}, s[16:19], s94 offen offset:{1024*(n&3)} sc1"]
        if (n & 3) == 3: g.append(f"v_add_u32 v{s.R}, 4096, v{s.R}")
        return g
    def take(s, k): return [s.nxt() for _ in range(min(k, 60 - s.n))]

def k1_half(mf, rd, pre=(), upd=(), groups=(), tail=()):
    n = len(mf); plan = {}
    for i, r in enumerate(rd): plan.setdefault(i, []).append(r)
    for i, p in enumerate(pre): plan.setdefault(i, []).append(p)
    idx = len(rd); ui = 0
    while ui < len(upd):
        j = min(idx, n-1)
        for _ in range(3):
            if ui < len(upd): plan.setdefault(j, []).append(upd[ui]); ui += 1
        idx += 1
    ng = len(groups)
    for gi, g in enumerate(groups):
        j = 1 + (gi * (n-3)) // max(ng, 1)
        plan.setdefault(j, []).extend(g)
    for i, t in enumerate(tail): plan.setdefault(n-2 if i < len(tail)-1 else n-1, []).append(t)
    return slots_merge(mf, plan)

def spin_check(a, name, ld, cmpreg, maskset):
    pass

PFX = {'G1': 0, 'DF': 0}
PAR = {'G1': [5,5,5,5,5,27,11,8], 'DF': [5,5,5,5,5,27,7,8]}
def k1_main(a, name, slot, mf0, mf1, rd1, rd0, addr_regs, dma_groups, nd, soffw_inc, w2l, WP, mf0z, dma_st):
    e = a.e
    updc = [f"v_add_u32 v{r}, {slot}, v{r}" for r in addr_regs]
    e(*k1_half(mf0z, rd1, upd=updc, groups=dma_st(2)))
    if name == "G1":
        e("s_cmp_ge_u32 s3, 120", "s_cbranch_scc1 G1_w0a", f"s_waitcnt vmcnt({nd+4+PFX[name]}) lgkmcnt(0)", "s_branch G1_w0b")
        a.lab("G1_w0a")
        e(f"s_waitcnt vmcnt({nd+PFX[name]}) lgkmcnt(0)")
        a.lab("G1_w0b")
    else:
        e(f"s_waitcnt vmcnt({nd+PFX[name]}) lgkmcnt(0)")
    e("s_barrier")
    e(*k1_half(mf1, rd0, groups=dma_st(3)))
    e("s_waitcnt lgkmcnt(0)")
    e(*k1_half(mf0, rd1, upd=updc, groups=dma_st(4)))
    e(f"s_waitcnt vmcnt({2*nd}) lgkmcnt(0)")
    e("s_barrier")
    e(*k1_half(mf1, rd0, groups=dma_st(5)))
    e("s_waitcnt lgkmcnt(0)")
    e("s_mov_b32 s27, 2", f"s_mov_b32 s64, {slot}")
    e(".p2align 5")
    a.lab(f"{name}_loop")
    pre = ["s_and_b32 s33, s27, 3", f"s_mul_i32 s30, s33, {slot}", "s_cmp_eq_u32 s33, 3", f"s_cselect_b32 s32, {-3*slot}, s64"]
    upd = [f"v_add_u32 v{r}, s32, v{r}" for r in addr_regs]
    e(*k1_half(mf0, rd1, pre=pre, upd=upd))
    e(f"s_waitcnt vmcnt({2*nd}) lgkmcnt(0)")
    e("s_barrier")
    if name == "G1":
        e("s_cmp_eq_u32 s27, s92", "s_cbranch_scc1 G1_sig")
        a.lab("G1_sigd")
    tail = ["s_add_u32 s28, s28, 128"] + ([f"s_add_u32 s29, s29, {soffw_inc}"] if soffw_inc else []) + ["s_add_u32 s27, s27, 1", "s_cmp_lt_u32 s27, 6"]
    e(*k1_half(mf1, rd0, groups=dma_groups, tail=tail))
    e("s_waitcnt lgkmcnt(0)")
    e(f"s_cbranch_scc1 {name}_loop")
    pa, pd = WP
    for s in range(6, 10):
        d = -3*slot if (s & 3) == 3 else slot
        upd = [f"v_add_u32 v{r}, {d}, v{r}" for r in addr_regs] if s < 9 else []
        cnt = PAR[name]
        g0 = w2l.take(cnt[2*(s-8)+1]) if s >= 8 else []
        e(*k1_half(mf0, rd1, upd=upd, groups=g0))
        if s == 6: e(f"s_waitcnt vmcnt({2*nd}) lgkmcnt(0)")
        elif s == 7: e("s_waitcnt vmcnt(0) lgkmcnt(0)")
        elif s == 8: e("s_waitcnt lgkmcnt(0)")
        else: e("s_waitcnt lgkmcnt(0)")
        if s < 9 or True: e("s_barrier")
        g1 = []
        if s == 6:
            g1 = [["s_mov_b64 exec, 0x3fffffff", f"global_load_dword v{pd}, v{pa}, s[86:87] sc1", "s_mov_b64 exec, -1"]]
        if s == 7:
            e("s_mov_b64 exec, 0x3fffffff", f"v_cmp_ne_u32 vcc, {NONCE}, v{pd}", "s_mov_b64 exec, -1", "s_nop 2", "s_cbranch_vccnz " + f"{name}_wsp")
            a.lab(f"{name}_wok")
        if s >= 7: g1 = w2l.take(cnt[2*(s-7)])
        e(*k1_half(mf1, rd0 if s < 9 else [], groups=g1))
        if s < 9: e("s_waitcnt lgkmcnt(0)")
    def ool(b):
        ee = b.e
        b.lab(f"{name}_wsp")
        ee("s_mov_b32 s62, 0", "s_mov_b64 exec, 0x3fffffff")
        b.lab(f"{name}_wsp1")
        ee(f"global_load_dword v{pd}, v{pa}, s[86:87] sc1", "s_waitcnt vmcnt(0)", f"v_cmp_ne_u32 vcc, {NONCE}, v{pd}", "s_add_u32 s62, s62, 1", "s_nop 1",
           f"s_cbranch_vccz {name}_wsp2", f"s_cmp_lt_u32 s62, {SPIN}", f"s_cbranch_scc1 {name}_wsp1")
        b.lab(f"{name}_wsp2")
        ee("s_mov_b64 exec, -1", f"s_branch {name}_wok")
    return ool

def gen_f(a):
    e = a.e
    ools = []
    e("s_cmp_ge_u32 s2, 256", "s_cbranch_scc1 F_end")
    e("s_load_dwordx16 s[36:51], s[0:1], 0")
    e("s_load_dwordx2 s[86:87], s[0:1], 80")
    e("s_load_dwordx2 s[20:21], s[0:1], 64")
    if STAMP: e("v_mov_b32 v255, 0")
    stamp(a, 30, True); stamp(a, 0)
    e("v_lshrrev_b32 v1, 6, v0", "v_and_b32 v0, 63, v0")
    e("v_readfirstlane_b32 s24, v1")
    if 'nopf' not in OPT:
        e("s_getpc_b64 s[96:97]")
        a.lab("F_pc")
        e("s_lshr_b32 s56, s2, 3", "s_lshl_b32 s57, s24, 5", "s_add_u32 s56, s56, s57", "s_lshl_b32 s56, s56, 10",
          "s_cmp_lt_u32 s56, F_codeend-F_pc-1024", "s_cbranch_scc0 F_nopf",
          "v_lshl_add_u32 v5, v0, 4, s56", "global_load_dwordx4 v[196:199], v5, s[96:97]")
        a.lab("F_nopf")
    e("s_and_b32 s88, s2, 7", "s_lshr_b32 s89, s2, 3", "s_lshr_b32 s56, s88, 1", "s_lshl_b32 s56, s56, 2",
      "s_and_b32 s57, s89, 3", "s_add_u32 s25, s56, s57", "s_lshr_b32 s58, s89, 2", "s_and_b32 s59, s88, 1")
    e("s_lshl_b32 s56, s56, 1", "s_and_b32 s57, s89, 7", "s_add_u32 s90, s56, s57",
      "s_lshl_b32 s56, s59, 2", "s_lshr_b32 s57, s89, 3", "s_add_u32 s91, s56, s57")
    e("v_and_b32 v1, 15, v0", "v_lshrrev_b32 v2, 4, v0", "v_lshrrev_b32 v3, 3, v0", "v_and_b32 v4, 7, v0")
    e(f"s_mov_b32 s6, {X_SZ}", f"s_mov_b32 s7, {SRD3}", f"s_mov_b32 s11, {SRD3}", f"s_mov_b32 s15, {SRD3}", f"s_mov_b32 s19, {SRD3}",
      f"s_mov_b32 s22, {X_SZ}", f"s_mov_b32 s23, {SRD3}")
    e("s_lshl_b32 s60, s25, 2", "s_add_u32 s60, s60, s24", "s_mul_i32 s61, s60, 1280", "s_lshl_b32 s34, s24, 12")
    e("s_mul_i32 s94, s91, 245760", "s_mul_i32 s56, s24, 61440", "s_add_u32 s94, s94, s56")
    e(f"v_mov_b32 v27, {EPO}")
    e("s_sub_u32 s3, s2, 64")
    if 'dff' in OPT:
        e("s_cmp_ge_u32 s58, 2", "s_cbranch_scc1 K1_g1")
        g1_i0 = len(a.L)
        a.lab("K1_g1")
    else:
        e("s_cmp_lt_u32 s58, 2", "s_cbranch_scc1 K1_dft")
    XV, WV, WA, XA0, XA1 = 8, 12, 16, 24, 25
    NV, W2R, PA, PD = 26, 254, 29, 30
    ACC, CS, SUM, SQ, ONES = 32, 96, 104, 112, 120
    A0, B0, A1, B1 = 124, 156, 164, 196
    T = 204
    PF, PL, PG, PW, PR = 164, 180, 204+16, 204+17, 204+18
    e("s_mul_i32 s26, s59, 6", "s_add_u32 s26, s26, s58", "s_sub_u32 s26, s26, 2")
    e("v_xor_b32 v5, v4, v2", "v_lshlrev_b32 v5, 4, v5")
    e("v_mov_b32 v7, 81920", "v_mul_u32_u24 v6, v7, v3")
    e("v_add3_u32 v6, v6, v5, s61")
    e(f"v_mov_b32 v{XV}, v6")
    e(f"v_xor_b32 v7, 64, v6")
    e(f"v_add_u32 v{XV+1}, {8*81920-1024}, v7")
    e(f"v_add_u32 v{XV+2}, {16*81920-2048}, v6")
    e(f"v_add_u32 v{XV+3}, {24*81920-3072}, v7")
    e("s_lshl_b32 s62, s24, 4", "v_add_u32 v5, s62, v2", "v_mul_u32_u24 v5, 3072, v5")
    e("v_lshlrev_b32 v6, 1, v2", "v_xor_b32 v6, v6, v1", "v_lshlrev_b32 v6, 4, v6")
    e("s_lshl_b32 s62, s26, 8", "v_add3_u32 v5, v5, v6, s62")
    e(f"v_mov_b32 v{WV}, v5", "v_xor_b32 v6, 128, v5")
    e(f"v_add_u32 v{WV+1}, {8*3072-1024}, v6")
    e(f"v_add_u32 v{WV+2}, {4*3072-2048}, v5")
    e(f"v_add_u32 v{WV+3}, {12*3072-3072}, v6")
    e("s_mul_i32 s56, s3, 2185", "s_lshr_b32 s56, s56, 16")
    e("s_mul_i32 s57, s56, 30", "s_sub_u32 s57, s3, s57")
    e("s_lshl_b32 s93, s56, 9", "s_lshl_b32 s62, s57, 4", "s_add_u32 s93, s93, s62", f"s_add_u32 s93, s93, {FL_W}")
    e("s_lshl_b32 s57, s57, 2", "s_add_u32 s57, s57, s24")
    e("s_mul_i32 s62, s57, 13108", "s_lshr_b32 s62, s62, 16")
    e("s_mul_i32 s63, s62, 5", "s_sub_u32 s63, s57, s63")
    e("s_mul_i32 s95, s62, 81920", "s_mul_i32 s57, s56, 320", "s_add_u32 s95, s95, s57", "s_lshl_b32 s57, s63, 6", "s_add_u32 s95, s95, s57")
    e("s_mul_i32 s56, s56, 491520", "s_mul_i32 s62, s62, 10240", "s_add_u32 s56, s56, s62")
    e("s_lshl_b32 s63, s63, 11")
    e(f"s_add_u32 s57, s63, {245760-5120}", "s_cmp_ge_u32 s63, 5120", "s_cselect_b32 s98, s57, s63", "s_add_u32 s98, s98, s56")
    e("s_add_u32 s63, s63, 1024", f"s_add_u32 s57, s63, {245760-5120}", "s_cmp_ge_u32 s63, 5120", "s_cselect_b32 s99, s57, s63", "s_add_u32 s99, s99, s56")
    e(f"v_lshrrev_b32 v5, 2, v0", "v_and_b32 v6, 3, v0", "v_mul_u32_u24 v7, 1280, v5", f"v_lshl_add_u32 v{PG}, v6, 4, v7")
    e("s_cmp_lt_u32 s3, 120", "s_cselect_b32 s92, 2, 99", "s_cmp_eq_u32 s24, 0", "s_cselect_b32 s92, s92, 99")
    e("s_waitcnt lgkmcnt(0)")
    stamp(a, 1)
    e("global_load_dword v26, v27, s[86:87] sc1")
    e("s_mov_b32 s4, s36", "s_mov_b32 s5, s37", "s_mov_b32 s8, s48", "s_mov_b32 s9, s49", f"s_mov_b32 s10, {W1_SZ}")
    e("s_mov_b32 s16, s50", "s_mov_b32 s17, s51", f"s_mov_b32 s18, {W2_SZ}")
    e("s_cmp_ge_u32 s3, 120", "s_cbranch_scc1 G1_nopre1")
    for n in range(4):
        e(f"buffer_load_dwordx4 {vr(PL+4*n,4)}, v{PG}, s[16:19], s95 offen")
        if n < 3: e("s_add_u32 s95, s95, 20480")
    a.lab("G1_nopre1")
    def g1_dma(m0x, m0w):
        g = []
        g.append([f"s_add_u32 m0, {m0x[0]}, {m0x[1]}", "s_nop 0", f"buffer_load_dwordx4 v{XV}, s[4:7], s28 offen lds"])
        for j in range(1, 4): g.append([f"buffer_load_dwordx4 v{XV+j}, s[4:7], s28 offen offset:{1024*j} lds"])
        g.append([f"s_add_u32 m0, {m0w[0]}, {m0w[1]}", "s_nop 0", f"buffer_load_dwordx4 v{WV}, s[8:11], s29 offen lds"])
        for j in range(1, 4): g.append([f"buffer_load_dwordx4 v{WV+j}, s[8:11], s29 offen offset:{1024*j} lds"])
        return g
    e("s_mov_b32 s28, 0", "s_mov_b32 s29, 0", "s_add_u32 s35, s34, 16384")
    def g1_st(st):
        gs = g1_dma(("s34", (st&3)*32768), ("s35", (st&3)*32768))
        gs[-1] = gs[-1] + ["s_add_u32 s28, s28, 128", "s_add_u32 s29, s29, 196608"]
        return gs
    dm = g1_st(0) + g1_st(1)
    S = A(); se = S.e
    se(f"v_lshrrev_b32 v5, 1, v1", "v_xor_b32 v5, v5, v2", "v_lshlrev_b32 v5, 4, v5")
    se(f"v_lshl_add_u32 v5, v1, 7, v5", f"v_add_u32 v{XA0}, s34, v5", f"v_xor_b32 v{XA1}, 64, v{XA0}")
    se("v_lshrrev_b32 v5, 2, v1", "v_and_b32 v6, 1, v2", "v_lshl_add_u32 v5, v6, 2, v5")
    se("v_lshrrev_b32 v6, 1, v2", "v_lshl_add_u32 v6, v6, 4, v5")
    se("v_lshlrev_b32 v6, 8, v6", "v_and_b32 v7, 3, v1", "v_lshl_add_u32 v6, v7, 3, v6", "v_add_u32 v6, 16384, v6")
    for t in range(8):
        se("s_lshl_b32 s62, s24, 1", f"s_add_u32 s62, s62, {t}", "s_and_b32 s62, s62, 7",
           "v_xor_b32 v7, s62, v5", f"v_lshl_add_u32 v{WA+t}, v7, 5, v6")
    lane_masks(S, T)
    for r in range(ONES, ONES+4): se(f"v_mov_b32 v{r}, 0x3f803f80")
    common_setup(S, W2R, PA, PW, PR)
    L = S.L; k = (len(L) + len(dm) - 5) // (len(dm) - 4)
    pos = 0
    for gi, g in enumerate(dm):
        e(*g)
        if gi >= 4:
            e(*L[pos:pos+k]); pos += k
    e(*L[pos:])
    PFN = 3 if 'pfx' in OPT else 0
    PFX['G1'] = PFN
    if PFN:
        e("s_sub_u32 s56, s58, 2", "s_lshl_b32 s56, s56, 2", "s_add_u32 s56, s56, s24", "s_lshl_b32 s56, s56, 6", "s_lshl_b32 s57, s25, 2", "s_add_u32 s56, s56, s57", "s_mul_i32 s56, s56, 1280")
        e("v_min_u32 v5, 9, v1", "v_lshlrev_b32 v5, 7, v5", "v_mad_u32_u24 v5, v2, 1280, v5" .replace("1280", "s57"), )
        a.L.insert(len(a.L)-1, "s_movk_i32 s57, 1280")
        e("buffer_load_dword v28, v5, s[4:7], s56 offen")
        e("s_and_b32 s56, s25, 3", "s_mul_i32 s56, s56, 160", "s_mul_i32 s57, s24, 40", "s_add_u32 s56, s56, s57", "s_mul_i32 s56, s56, 3072", "s_lshl_b32 s57, s26, 8", "s_add_u32 s56, s56, s57")
        e("v_lshrrev_b32 v5, 1, v0", "v_mul_u32_u24 v5, 3072, v5", "v_and_b32 v6, 1, v0", "v_lshl_add_u32 v5, v6, 7, v5")
        e("buffer_load_dword v28, v5, s[8:11], s56 offen", f"s_add_u32 s56, s56, {8*3072}", "buffer_load_dword v28, v5, s[8:11], s56 offen")
    stamp(a, 2)
    e(f"s_waitcnt vmcnt({16+PFN})")
    nonce_calc(a, 26)
    e("s_mov_b32 s16, s86", "s_mov_b32 s17, s87", f"s_add_u32 s16, s16, {W2T_OFF}", "s_addc_u32 s17, s17, 0", f"s_mov_b32 s18, {W2T_SZ}")
    e("s_cmp_ge_u32 s3, 120", "s_cbranch_scc1 G1_nopre2")
    for n in range(4): e(f"ds_write_b128 v{PW}, {vr(PL+4*n,4)} offset:{16*80*n}")
    for k2 in range(2):
        for nt in range(2):
            for hf in range(2):
                e(f"ds_read_b64_tr_b16 {vr(PF+8*k2+4*nt+2*hf,2)}, v{PR} offset:{k2*32*80+hf*16*80+nt*32}")
    e("v_lshlrev_b32 v5, 4, v0", "s_waitcnt lgkmcnt(0)")
    for k2 in range(2):
        for nt in range(2):
            e(f"buffer_store_dwordx4 {vr(PF+8*k2+4*nt,4)}, v5, s[16:19], s{98+nt} offen offset:{0} sc1" if k2 == 0 else
              f"buffer_store_dwordx4 {vr(PF+8*k2+4*nt,4)}, v5, s[16:19], s{98+nt} offen offset:{0} sc1")
        if k2 == 0: e("s_add_u32 s98, s98, 5120", "s_add_u32 s99, s99, 5120")
    e(f"s_waitcnt vmcnt({12+PFN})", "s_branch G1_pre_done")
    a.lab("G1_nopre2")
    e(f"s_waitcnt vmcnt({8+PFN})")
    a.lab("G1_pre_done")
    def g1_mf(Ab, Bb, mfma=mfma):
        m = []
        for t in range(8):
            for mt in range(2): m.append(mfma(ACC + (t*2+mt)*4, Ab + 4*t, Bb + 4*mt))
            if t < 2: m.append(mfma(CS + 4*t, Ab + 4*t, ONES))
            if t in (2, 3): m.append(mfma(SUM + 4*(t-2), ONES, Bb + 4*(t-2)))
            if t in (4, 5): m.append(mfma(SQ + 4*(t-4), Bb + 4*(t-4), Bb + 4*(t-4)))
        return m
    def g1_rd(Ab, Bb, xa, kk):
        r = []
        for mt in range(2): r.append(f"ds_read_b128 {vr(Bb+4*mt,4)}, v{xa} offset:{2048*mt}")
        for t in range(8):
            for hf in range(2): r.append(f"ds_read_b64_tr_b16 {vr(Ab+4*t+2*hf,2)}, v{WA+t} offset:{kk*8192+hf*2048}")
        return r
    e("s_barrier")
    stamp(a, 3)
    e(*g1_rd(A0, B0, XA0, 0))
    e("s_waitcnt lgkmcnt(0)")
    w2l = W2L(W2R)
    ool = k1_main(a, "G1", 32768, g1_mf(A0, B0), g1_mf(A1, B1), g1_rd(A1, B1, XA1, 1), g1_rd(A0, B0, XA0, 0),
            [WA+t for t in range(8)] + [XA0, XA1], g1_dma(("s30", "s34"), ("s30", "s35")), 8, 196608, w2l, (PA, PD), g1_mf(A0, B0, mfma0), g1_st)
    ools.append(ool)
    def sig(b):
        b.lab("G1_sig")
        b.e("v_mov_b32 v5, s93", f"v_mov_b32 v6, {NONCE}", "s_mov_b64 exec, 1", "global_store_dword v5, v6, s[86:87] sc1", "s_mov_b64 exec, -1", "s_branch G1_sigd")
    ools.append(sig)
    stamp(a, 4)
    E = A(); ee = E.e
    ee("s_nop 7", "s_nop 7")
    ee("s_lshl_b32 s62, s24, 7", "s_add_u32 s62, s62, 131072")
    ee(f"v_lshl_add_u32 v5, v2, 4, s62")
    ee(f"ds_write_b128 v5, {vr(CS,4)}", f"ds_write_b128 v5, {vr(CS+4,4)} offset:64")
    MB, RS = [T+12, T+13], [T+14, T+15]
    stats_code(E, [SUM, SUM+4], [SQ, SQ+4], T, [(MB[0], RS[0]), (MB[1], RS[1])])
    for mt in range(2): ee(f"v_mul_f32 v{RS[mt]}, {fhex(-LOG2E)}, v{RS[mt]}")
    ee("s_waitcnt lgkmcnt(0)", "s_barrier")
    stamp(E, 11)
    CSR = A0
    for t in range(8):
        ee("s_lshl_b32 s62, s24, 1", f"s_add_u32 s62, s62, {t}", "s_and_b32 s62, s62, 7", "s_lshl_b32 s62, s62, 6", "s_add_u32 s62, s62, 131072",
           f"v_lshl_add_u32 v5, v2, 4, s62", f"ds_read_b128 {vr(CSR+4*t,4)}, v5")
    ee("s_mov_b32 s12, s86", "s_mov_b32 s13, s87", f"s_mov_b32 s14, {H_SZ}")
    ee("s_and_b32 s62, s60, 31", "s_mul_i32 s62, s62, 48", "s_lshl_b32 s63, s26, 2", "s_add_u32 s62, s62, s63", "s_lshl_b32 s62, s62, 2",
       "s_lshr_b32 s63, s25, 3", "s_lshl_b32 s63, s63, 1", "s_add_u32 s62, s62, s63", "s_lshl_b32 s62, s62, 10")
    ee("v_lshlrev_b32 v6, 4, v0")
    ee("s_waitcnt lgkmcnt(0)")
    TT = A1
    stamp(E, 12)
    for u in range(4):
        ee(f"s_add_u32 s63, s24, {u}", "s_and_b32 s63, s63, 3", "s_lshl_b32 s63, s63, 12", "s_add_u32 s63, s63, s62")
        for mt in range(2):
            tb = TT + ((u*2+mt) & 1) * 20
            z = tb; ex = tb + 8; pk = tb + 16
            vals = [(ACC + ((2*u+h)*2+mt)*4 + r, CSR + (2*u+h)*4 + r) for h in range(2) for r in range(4)]
            for k, (ac, cs) in enumerate(vals): ee(f"v_fma_f32 v{z+k}, -v{MB[mt]}, v{cs}, v{ac}")
            for k in range(0, 8, 2): ee(f"v_pk_mul_f32 {vr(z+k,2)}, {vr(z+k,2)}, {vr(RS[mt]&~1,2)} op_sel:[0,{RS[mt]&1}] op_sel_hi:[1,{RS[mt]&1}]")
            for k in range(8): ee(f"v_exp_f32 v{ex+k}, v{z+k}")
            for k in range(0, 8, 2): ee(f"v_pk_add_f32 {vr(ex+k,2)}, {vr(ex+k,2)}, 1.0 op_sel_hi:[1,0]")
            for k in range(8): ee(f"v_rcp_f32 v{ex+k}, v{ex+k}")
            for k in range(0, 8, 2): ee(f"v_pk_mul_f32 {vr(z+k,2)}, {vr(z+k,2)}, {vr(ex+k,2)}")
            for k in range(4): ee(f"v_cvt_pk_bf16_f32 v{pk+k}, v{z+2*k}, v{z+2*k+1}")
            ee(f"buffer_store_dwordx4 {vr(pk,4)}, v6, s[12:15], s63 offen offset:{1024*mt} sc1")
    out, left = merge_safe(E.L, w2l.take(PAR['G1'][5]), PAR['G1'][6], start=4)
    e(*out)
    for g in left: e(*g)
    stamp(a, 5)
    rest = w2l.take(60)
    e("s_mul_i32 s56, s26, 22", "s_lshr_b32 s56, s56, 6", "s_mul_i32 s57, s56, 3", "s_sub_u32 s57, s26, s57", "s_lshl_b32 s57, s57, 1",
      "s_lshr_b32 s62, s25, 3", "s_add_u32 s57, s57, s62", "s_lshl_b32 s57, s57, 4", "s_lshl_b32 s56, s56, 7", "s_add_u32 s57, s57, s56",
      "s_and_b32 s56, s25, 7", "s_lshl_b32 s56, s56, 9", "s_add_u32 s57, s57, s56", f"s_add_u32 s93, s57, {FL_H}")
    publish(a, "G1", rest, PAR['G1'][7])
    e("s_branch K2_start")
    if 'dff' in OPT:
        g1_code = a.L[g1_i0:]; del a.L[g1_i0:]
    a.lab("K1_dft")
    XV, DV, XA0, XA1, BA0, BA1 = 8, 12, 17, 18, 19, 20
    NV, W2R, PA, PD = 26, 28, 29, 30
    ACC, SUM, SQ, ONES = 32-8, 104, 112, 120
    ACC = 24
    W2R, PA, PD = 254, 253, 252
    A0, B0, A1, B1 = 124, 132, 172, 180
    WC = 220
    e("s_lshl_b32 s26, s59, 1", "s_add_u32 s26, s26, s58")
    e("v_xor_b32 v5, v4, v2", "v_lshlrev_b32 v5, 4, v5")
    e("v_lshrrev_b32 v6, 2, v3", "v_and_b32 v7, 3, v3", "v_lshl_add_u32 v6, v6, 3, v7")
    e("v_mov_b32 v7, 81920", "v_mul_u32_u24 v6, v7, v6")
    e("v_add3_u32 v6, v6, v5, s61")
    e(f"v_mov_b32 v{XV}, v6", "v_xor_b32 v7, 64, v6")
    e(f"v_add_u32 v{XV+1}, {16*81920-1024}, v7")
    e(f"v_add_u32 v{XV+2}, {4*81920-2048}, v6")
    e(f"v_add_u32 v{XV+3}, {20*81920-3072}, v7")
    e("s_and_b32 s62, s24, 1", "s_lshl_b32 s63, s62, 2", "v_add_u32 v5, s63, v2", "v_xor_b32 v5, v5, v4", "v_lshlrev_b32 v5, 4, v5")
    e("s_mul_i32 s63, s26, 80", "s_lshl_b32 s62, s62, 3", "s_add_u32 s63, s63, s62", "v_add_u32 v6, s63, v3")
    e("v_mov_b32 v7, 1280", "v_mad_u32_u24 v21, v6, v7, v5")
    for j in range(1, 5): e(f"v_add_u32 v{DV+j}, {16*1280*j - (1024*j if j < 4 else 0)}, v21")
    e("v_cmp_eq_u32 vcc, 0, v6", f"v_add_u32 v22, {320*1280}, v21", "s_nop 0", f"v_cndmask_b32 v{DV}, v21, v22, vcc")
    e("v_lshlrev_b32 v5, 18, v1", "v_lshl_add_u32 v5, v2, 4, v5", f"v_add_u32 v6, {16*262144}, v5")
    e("s_mov_b32 s28, 0", "s_mul_i32 s35, s24, 5120", "s_add_u32 s35, s35, 16384")
    e("s_waitcnt lgkmcnt(0)")
    stamp(a, 1)
    e("global_load_dword v23, v27, s[86:87] sc1")
    e("s_mov_b32 s4, s36", "s_mov_b32 s5, s37")
    e("s_cmp_ge_u32 s24, 2", "s_cselect_b32 s8, s44, s42", "s_cselect_b32 s9, s45, s43", f"s_mov_b32 s10, {WD_SZ}")
    def dft_dma(base0, base1):
        g = []
        g.append([f"s_add_u32 m0, {base0[0]}, {base0[1]}", "s_nop 0", f"buffer_load_dwordx4 v{XV}, s[4:7], s28 offen lds"])
        for j in range(1, 4): g.append([f"buffer_load_dwordx4 v{XV+j}, s[4:7], s28 offen offset:{1024*j} lds"])
        g.append([f"s_add_u32 m0, {base1[0]}, {base1[1]}", "s_nop 0", f"buffer_load_dwordx4 v{DV}, s[8:11], s28 offen lds"])
        for j in range(1, 4): g.append([f"buffer_load_dwordx4 v{DV+j}, s[8:11], s28 offen offset:{1024*j} lds"])
        g.append(["s_add_u32 m0, m0, 4096", "s_nop 0", f"buffer_load_dwordx4 v{DV+4}, s[8:11], s28 offen lds"])
        return g
    def dft_st(st):
        gs = dft_dma(("s34", (st&3)*36864), ("s35", (st&3)*36864))
        gs[-1] = gs[-1] + ["s_add_u32 s28, s28, 128"]
        return gs
    dm = dft_st(0)
    dm.append([f"global_load_dwordx4 {vr(WC,4)}, v5, s[38:39]", f"global_load_dwordx4 {vr(WC+4,4)}, v6, s[38:39]",
               f"global_load_dwordx4 {vr(WC+8,4)}, v5, s[40:41]", f"global_load_dwordx4 {vr(WC+12,4)}, v6, s[40:41]"])
    dm += dft_st(1)
    T = 236
    S = A(); se = S.e
    se(f"v_lshrrev_b32 v7, 1, v1", "v_xor_b32 v7, v7, v2", "v_lshlrev_b32 v7, 4, v7")
    se(f"v_lshl_add_u32 v21, v1, 7, v7", f"v_add_u32 v{XA0}, s34, v21", f"v_xor_b32 v{XA1}, 64, v{XA0}")
    se("v_lshrrev_b32 v21, 3, v1", "v_mul_u32_u24 v21, 5120, v21", "v_and_b32 v22, 7, v1", "v_lshl_add_u32 v21, v22, 7, v21")
    se(f"v_add_u32 v21, v21, v7", f"v_add_u32 v{BA0}, 16384, v21", f"v_xor_b32 v{BA1}, 64, v{BA0}")
    for r in range(ONES, ONES+4): se(f"v_mov_b32 v{r}, 0x3f803f80")
    lane_masks(S, T)
    common_setup(S, W2R, PA, None, None)
    L = S.L; k = (len(L) + len(dm) - 11) // (len(dm) - 10)
    pos = 0
    for gi, g in enumerate(dm):
        e(*g)
        if gi >= 10:
            e(*L[pos:pos+k]); pos += k
    e(*L[pos:])
    PFN = 4 if 'pfx' in OPT else 0
    PFX['DF'] = PFN
    if PFN:
        e("s_add_u32 s56, s58, 6", "s_lshl_b32 s56, s56, 2", "s_add_u32 s56, s56, s24", "s_lshl_b32 s56, s56, 6", "s_lshl_b32 s57, s25, 2", "s_add_u32 s56, s56, s57", "s_mul_i32 s56, s56, 1280")
        e("v_min_u32 v5, 9, v1", "v_lshlrev_b32 v5, 7, v5", "s_movk_i32 s57, 1280", "v_mad_u32_u24 v5, v2, s57, v5")
        e("buffer_load_dword v22, v5, s[4:7], s56 offen")
        e("s_and_b32 s56, s25, 3", "s_mul_i32 s56, s56, 20", "s_mul_i32 s57, s26, 80", "s_add_u32 s56, s56, s57", "s_and_b32 s57, s24, 1", "s_mul_i32 s57, s57, 10", "s_add_u32 s56, s56, s57", "s_mul_i32 s56, s56, 1280")
        e("buffer_load_dword v22, v5, s[8:11], s56 offen", f"s_add_u32 s56, s56, {4*1280}", "buffer_load_dword v22, v5, s[8:11], s56 offen",
          f"s_add_u32 s56, s56, {2*1280}", "buffer_load_dword v22, v5, s[8:11], s56 offen")
    stamp(a, 2)
    e(f"s_waitcnt vmcnt({13+PFN})")
    nonce_calc(a, 23)
    e("s_mov_b32 s16, s86", "s_mov_b32 s17, s87", f"s_add_u32 s16, s16, {W2T_OFF}", "s_addc_u32 s17, s17, 0", f"s_mov_b32 s18, {W2T_SZ}")
    def dacc(p, part, mt): return ACC + ((p*2+part)*2+mt)*4
    def dft_mf(Ab, Bb, mfma=mfma):
        m = []
        for p in range(5):
            for part in range(2):
                for mt in range(2): m.append(mfma(dacc(p, part, mt), Ab + 4*mt, Bb + (part*5+p)*4))
            if p < 2: m.append(mfma(SUM + 4*p, ONES, Ab + 4*p))
            if p in (2, 3): m.append(mfma(SQ + 4*(p-2), Ab + 4*(p-2), Ab + 4*(p-2)))
        return m
    def dft_rd(Ab, Bb, xa, ba):
        r = []
        for mt in range(2): r.append(f"ds_read_b128 {vr(Ab+4*mt,4)}, v{xa} offset:{2048*mt}")
        for p in range(5):
            for part in range(2): r.append(f"ds_read_b128 {vr(Bb+(part*5+p)*4,4)}, v{ba} offset:{part*10240+p*1024}")
        return r
    e("s_barrier")
    stamp(a, 3)
    e(*dft_rd(A0, B0, XA0, BA0))
    e("s_waitcnt lgkmcnt(0)")
    w2l = W2L(W2R)
    ool = k1_main(a, "DF", 36864, dft_mf(A0, B0), dft_mf(A1, B1), dft_rd(A1, B1, XA1, BA1), dft_rd(A0, B0, XA0, BA0),
            [XA0, XA1, BA0, BA1], dft_dma(("s30", "s34"), ("s30", "s35")), 9, 0, w2l, (PA, PD), dft_mf(A0, B0, mfma0), dft_st)
    ools.append(ool)
    stamp(a, 4)
    E = A(); ee = E.e
    ee("s_nop 7", "s_nop 7")
    MB, RS = [T+12, T+13], [T+14, T+15]
    stats_code(E, [SUM, SUM+4], [SQ, SQ+4], T, [(MB[0], RS[0]), (MB[1], RS[1])])
    RR = A0
    ee("v_lshlrev_b32 v5, 4, v2")
    for mt in range(2):
        for r in range(4): ee(f"v_add_u32 v6, {4*r}, v5", f"ds_bpermute_b32 v{RR+mt*4+r}, v6, v{RS[mt]}")
    for k in range(8): ee(f"v_xor_b32 v{WC+16+k}, 0x80008000, v{WC+8+k}")
    ee("s_waitcnt lgkmcnt(0)")
    stamp(E, 11)
    PK = B0
    for p in range(5):
        for part in range(2):
            for mt in range(2):
                ac = dacc(p, part, mt)
                for r in range(0, 4, 2): ee(f"v_pk_mul_f32 {vr(ac+r,2)}, {vr(ac+r,2)}, {vr(RR+mt*4+r,2)}")
            for mt in range(2):
                ac = dacc(p, part, mt)
                for h in range(2): ee(f"v_cvt_pk_bf16_f32 v{PK+8*p+4*part+2*mt+h}, v{ac+2*h}, v{ac+2*h+1}")
    ee("s_nop 1")
    def ud(p, nt, c): return ACC + p*16 + nt*8 + 4*c
    mm = []
    for p in range(5):
        aa, bb = PK+8*p, PK+8*p+4
        for nt in range(2):
            mm.append(mfma0(ud(p, nt, 0), aa, WC + 4*nt)); mm.append(mfma0(ud(p, nt, 1), aa, WC + 8 + 4*nt))
        for nt in range(2):
            mm.append(mfma(ud(p, nt, 0), bb, WC + 16 + 4*nt)); mm.append(mfma(ud(p, nt, 1), bb, WC + 4*nt))
    LA, GA = B1, B1 + 10
    ee("s_movk_i32 s56, 1296", "s_mov_b32 s57, 81920", "s_lshl_b32 s63, s24, 3")
    ad = []
    for i in range(10):
        ad += [[f"v_add_u32 v5, {64*i}, v0", "v_mul_u32_u24 v6, 205, v5"], ["v_lshrrev_b32 v6, 14, v6", "v_mul_u32_u24 v7, 80, v6"],
               ["v_sub_u32 v5, v5, v7", "v_lshlrev_b32 v5, 4, v5", "v_add_u32 v6, s63, v6"],
               [f"v_mad_u32_u24 v{LA+i}, v6, s56, v5", f"v_mad_u32_u24 v{GA+i}, v6, s57, v5"]]
    ee(*interleave(mm, ad, start=0, per=1))
    ee(f"s_mov_b32 s14, {U_SZ}", "s_mov_b32 s12, s86", "s_mov_b32 s13, s87")
    ee(f"s_add_u32 s12, s12, {U_OFF}", "s_addc_u32 s13, s13, 0")
    ee("s_mul_i32 s62, s26, 20480", "s_mul_i32 s63, s25, 1280", "s_add_u32 s62, s62, s63")
    ee("s_mul_i32 s63, s24, 320", "v_mul_u32_u24 v5, 1296, v1", "v_lshl_add_u32 v5, v2, 4, v5", "v_add_u32 v5, s63, v5")
    ee("s_nop 7")
    stamp(E, 12)
    k = 0
    for p in range(5):
        for nt in range(2):
            tb = B1 + 20 + (k % 4) * 4; k += 1
            re, im = ud(p, nt, 0), ud(p, nt, 1)
            ee(f"v_cvt_pk_bf16_f32 v{tb}, v{re}, v{re+1}", f"v_cvt_pk_bf16_f32 v{tb+1}, v{re+2}, v{re+3}",
               f"v_cvt_pk_bf16_f32 v{tb+2}, v{im}, v{im+1}", f"v_cvt_pk_bf16_f32 v{tb+3}, v{im+2}, v{im+3}")
            ee(f"ds_write_b128 v5, {vr(tb,4)} offset:{nt*20736+p*64}")
    ee("s_waitcnt lgkmcnt(0)", "s_barrier")
    for i in range(10): ee(f"ds_read_b128 {vr(PK+4*i,4)}, v{LA+i}")
    for i in range(10):
        ee(f"s_waitcnt lgkmcnt({9-i})", f"buffer_store_dwordx4 {vr(PK+4*i,4)}, v{GA+i}, s[12:15], s62 offen sc1")
    out, left = merge_safe(E.L, w2l.take(PAR['DF'][5]), PAR['DF'][6], start=4)
    e(*out)
    for g in left: e(*g)
    stamp(a, 5)
    rest = w2l.take(60)
    e("s_lshl_b32 s57, s26, 4", "s_add_u32 s57, s57, s25", "s_lshl_b32 s57, s57, 4", f"s_add_u32 s93, s57, {FL_U}")
    publish(a, "DF", rest, PAR['DF'][7])
    a.lab("K2_start")
    from gen2k2 import gen_k2f
    gen_k2f(a, ools, stamp, stamp_out)
    a.lab("F_end")
    e("s_endpgm")
    if 'dff' in OPT: a.L += g1_code
    for o in ools: o(a)
    a.lab("F_codeend")

def merge_safe(main, fill, every, start=0):
    out = []; fi = 0; cnt = 0
    for i, m in enumerate(main):
        out.append(m)
        if i >= start:
            cnt += 1
            nxt = main[i+1] if i+1 < len(main) else ""
            if cnt >= every and fi < len(fill) and not nxt.startswith(("s_addc", "s_cselect", "s_cbranch", "v_cndmask")):
                out += fill[fi]; fi += 1; cnt = 0
    return out, fill[fi:]

def nonce_calc(a, v):
    a.e("s_nop 0", f"v_readfirstlane_b32 {NONCE}, v{v}", "s_nop 3", f"s_mul_i32 {NONCE}, {NONCE}, 0x9E3779B1", f"s_add_u32 {NONCE}, {NONCE}, 0x7F4A7C15")

def common_setup(S, W2R, PA, PW, PR):
    se = S.e
    se(f"v_lshlrev_b32 v{W2R}, 4, v0")
    se("s_lshr_b32 s62, s91, 1", "s_lshl_b32 s62, s62, 9", f"s_add_u32 s62, s62, {FL_W}", f"v_lshl_add_u32 v{PA}, v0, 4, s62")
    if PW is not None:
        se("s_mul_i32 s62, s24, 5120", "s_add_u32 s62, s62, 131072")
        se("v_lshrrev_b32 v7, 2, v0", "v_mul_u32_u24 v7, 80, v7", "v_and_b32 v6, 3, v0", "v_lshl_add_u32 v7, v6, 4, v7", f"v_add_u32 v{PW}, s62, v7")
        se("v_lshrrev_b32 v7, 2, v1", "v_lshl_add_u32 v7, v2, 2, v7", "v_mul_u32_u24 v7, 80, v7", "v_lshl_add_u32 v7, v6, 3, v7", f"v_add_u32 v{PR}, s62, v7")

def publish(a, name, rest, npre):
    e = a.e
    from gen2k2 import k2_setup
    nrest = min(npre, len(rest))
    for g in rest[:nrest]: e(*g)
    import gen2k2
    early_ws = (name == "DF") != ('wsx' in OPT)
    if 'wsa' in OPT: early_ws = True
    k2_setup(a, early_ws)
    stamp(a, 13)
    e(f"s_waitcnt vmcnt({nrest + (8 if early_ws else 0)})")
    stamp(a, 14)
    e("s_barrier")
    stamp(a, 6)
    e("s_cmp_lg_u32 s24, 0", f"s_cbranch_scc1 {name}_pubd")
    e("v_mov_b32 v5, s93", f"v_mov_b32 v6, {NONCE}", "s_mov_b64 exec, 1", "global_store_dword v5, v6, s[86:87] sc1", "s_mov_b64 exec, -1")
    a.lab(f"{name}_pubd")
    if not early_ws: gen2k2.ws_loads(a)
    for g in rest[nrest:]: e(*g)

def build():
    lab = "f_kernel" if 'list' in OPT else KN + "_kernel"
    out = HEADER
    if 'list' in OPT: out += f"; @launch kernel={lab} grid=(256,1,1) block=(256,1,1) lds=160768\n"
    else: out += f"; @launch grid=(256,1,1) block=(256,1,1) lds=160768\n"
    out += '.amdgcn_target "amdgcn-amd-amdhsa--gfx950"\n.text\n'
    a = A(); gen_f(a)
    out += f".globl {lab}\n.p2align 8\n.type {lab},@function\n{lab}:\n" + a.text()
    out += '.section .rodata,"a"\n.p2align 6\n' + gen.kernel_desc(lab, 256, 256, 512)
    return out

if __name__ == "__main__":
    out = sys.argv[1]
    if len(sys.argv) > 2:
        for o in sys.argv[2].split(','):
            if o == 'st': STAMP = True
            elif o.startswith('US='):
                import gen2k2; gen2k2.USTEP = int(o[3:])
            elif o.startswith('G1=') or o.startswith('DF='): PAR[o[:2]] = [int(x) for x in o[3:].split('.')]
            else: OPT.add(o)
    import gen2k2
    gen2k2.OPT = OPT; gen2k2.STAMP = STAMP
    open(out, "w").write(build())
```

```python
import sys
from asmlib import *
import gen
from gen import KN, LOG2E, LN2, H_OFF, H_SZ, U_OFF, U_SZ, X_SZ, W1_SZ, WD_SZ, W2_SZ, SRD3, HEADER, stats_code, lane_masks
W2T_OFF = 0x900000; W2T_SZ = 8*245760
FL = 0xB00000; FL_H = FL; FL_U = FL + 4096; FL_W = FL + 8192; EPO = FL + 16384
SPIN = 200000
STAMP = False
OPT = set()
NONCE = "s65"
def stamp(a, lane, rt=False):
    if STAMP: a.e(f"s_mem{'real' if rt else ''}time s[66:67]", "s_waitcnt lgkmcnt(0)", f"v_writelane_b32 v255, s66, {lane}")
def stamp_out(a):
    if not STAMP: return
    e = a.e
    e("s_waitcnt vmcnt(0)")
    stamp(a, 15); stamp(a, 31, True)
    e("s_lshl_b32 s96, s2, 9", "s_lshl_b32 s97, s24, 7", "s_add_u32 s96, s96, s97", "s_add_u32 s96, s96, 0xF00000")
    e("s_mov_b64 exec, 0xffffffff", "v_lshlrev_b32 v4, 2, v0", "v_add_u32 v4, s96, v4")
    e("global_store_dword v4, v255, s[86:87]", "s_waitcnt vmcnt(0)")

def merge(main, fill, every, start=0):
    out = []; fi = 0; cnt = 0
    for i, m in enumerate(main):
        out.append(m)
        if i >= start:
            cnt += 1
            if cnt >= every and fi < len(fill):
                out += fill[fi]; fi += 1; cnt = 0
    return out, fill[fi:]

class W2L:
    def __init__(s, R): s.n = 0; s.R = R
    def nxt(s):
        n = s.n; s.n += 1
        g = [f"buffer_load_dwordx4 {ar(4*n,4)}, v{s.R}, s[16:19], s94 offen offset:{1024*(n&3)} sc1"]
        if (n & 3) == 3: g.append(f"v_add_u32 v{s.R}, 4096, v{s.R}")
        return g
    def take(s, k): return [s.nxt() for _ in range(min(k, 60 - s.n))]

def k1_half(mf, rd, pre=(), upd=(), groups=(), tail=()):
    n = len(mf); plan = {}
    for i, r in enumerate(rd): plan.setdefault(i, []).append(r)
    for i, p in enumerate(pre): plan.setdefault(i, []).append(p)
    idx = len(rd); ui = 0
    while ui < len(upd):
        j = min(idx, n-1)
        for _ in range(3):
            if ui < len(upd): plan.setdefault(j, []).append(upd[ui]); ui += 1
        idx += 1
    ng = len(groups)
    for gi, g in enumerate(groups):
        j = 1 + (gi * (n-3)) // max(ng, 1)
        plan.setdefault(j, []).extend(g)
    for i, t in enumerate(tail): plan.setdefault(n-2 if i < len(tail)-1 else n-1, []).append(t)
    return slots_merge(mf, plan)

def spin_check(a, name, ld, cmpreg, maskset):
    pass

PFX = {'G1': 0, 'DF': 0}
PAR = {'G1': [5,5,5,5,5,27,11,8], 'DF': [5,5,5,5,5,27,7,8]}
def k1_main(a, name, slot, mf0, mf1, rd1, rd0, addr_regs, dma_groups, nd, soffw_inc, w2l, WP, mf0z, dma_st):
    e = a.e
    updc = [f"v_add_u32 v{r}, {slot}, v{r}" for r in addr_regs]
    e(*k1_half(mf0z, rd1, upd=updc, groups=dma_st(2)))
    if name == "G1":
        e("s_cmp_ge_u32 s3, 120", "s_cbranch_scc1 G1_w0a", f"s_waitcnt vmcnt({nd+4+PFX[name]}) lgkmcnt(0)", "s_branch G1_w0b")
        a.lab("G1_w0a")
        e(f"s_waitcnt vmcnt({nd+PFX[name]}) lgkmcnt(0)")
        a.lab("G1_w0b")
    else:
        e(f"s_waitcnt vmcnt({nd+PFX[name]}) lgkmcnt(0)")
    e("s_barrier")
    e(*k1_half(mf1, rd0, groups=dma_st(3)))
    e("s_waitcnt lgkmcnt(0)")
    e(*k1_half(mf0, rd1, upd=updc, groups=dma_st(4)))
    e(f"s_waitcnt vmcnt({2*nd}) lgkmcnt(0)")
    e("s_barrier")
    e(*k1_half(mf1, rd0, groups=dma_st(5)))
    e("s_waitcnt lgkmcnt(0)")
    e("s_mov_b32 s27, 2", f"s_mov_b32 s64, {slot}")
    e(".p2align 5")
    a.lab(f"{name}_loop")
    pre = ["s_and_b32 s33, s27, 3", f"s_mul_i32 s30, s33, {slot}", "s_cmp_eq_u32 s33, 3", f"s_cselect_b32 s32, {-3*slot}, s64"]
    upd = [f"v_add_u32 v{r}, s32, v{r}" for r in addr_regs]
    e(*k1_half(mf0, rd1, pre=pre, upd=upd))
    e(f"s_waitcnt vmcnt({2*nd}) lgkmcnt(0)")
    e("s_barrier")
    if name == "G1":
        e("s_cmp_eq_u32 s27, s92", "s_cbranch_scc1 G1_sig")
        a.lab("G1_sigd")
    tail = ["s_add_u32 s28, s28, 128"] + ([f"s_add_u32 s29, s29, {soffw_inc}"] if soffw_inc else []) + ["s_add_u32 s27, s27, 1", "s_cmp_lt_u32 s27, 6"]
    e(*k1_half(mf1, rd0, groups=dma_groups, tail=tail))
    e("s_waitcnt lgkmcnt(0)")
    e(f"s_cbranch_scc1 {name}_loop")
    pa, pd = WP
    for s in range(6, 10):
        d = -3*slot if (s & 3) == 3 else slot
        upd = [f"v_add_u32 v{r}, {d}, v{r}" for r in addr_regs] if s < 9 else []
        cnt = PAR[name]
        g0 = w2l.take(cnt[2*(s-8)+1]) if s >= 8 else []
        e(*k1_half(mf0, rd1, upd=upd, groups=g0))
        if s == 6: e(f"s_waitcnt vmcnt({2*nd}) lgkmcnt(0)")
        elif s == 7: e("s_waitcnt vmcnt(0) lgkmcnt(0)")
        elif s == 8: e("s_waitcnt lgkmcnt(0)")
        else: e("s_waitcnt lgkmcnt(0)")
        if s < 9 or True: e("s_barrier")
        g1 = []
        if s == 6:
            g1 = [["s_mov_b64 exec, 0x3fffffff", f"global_load_dword v{pd}, v{pa}, s[86:87] sc1", "s_mov_b64 exec, -1"]]
        if s == 7:
            e("s_mov_b64 exec, 0x3fffffff", f"v_cmp_ne_u32 vcc, {NONCE}, v{pd}", "s_mov_b64 exec, -1", "s_nop 2", "s_cbranch_vccnz " + f"{name}_wsp")
            a.lab(f"{name}_wok")
        if s >= 7: g1 = w2l.take(cnt[2*(s-7)])
        e(*k1_half(mf1, rd0 if s < 9 else [], groups=g1))
        if s < 9: e("s_waitcnt lgkmcnt(0)")
    def ool(b):
        ee = b.e
        b.lab(f"{name}_wsp")
        ee("s_mov_b32 s62, 0", "s_mov_b64 exec, 0x3fffffff")
        b.lab(f"{name}_wsp1")
        ee(f"global_load_dword v{pd}, v{pa}, s[86:87] sc1", "s_waitcnt vmcnt(0)", f"v_cmp_ne_u32 vcc, {NONCE}, v{pd}", "s_add_u32 s62, s62, 1", "s_nop 1",
           f"s_cbranch_vccz {name}_wsp2", f"s_cmp_lt_u32 s62, {SPIN}", f"s_cbranch_scc1 {name}_wsp1")
        b.lab(f"{name}_wsp2")
        ee("s_mov_b64 exec, -1", f"s_branch {name}_wok")
    return ool

def gen_f(a):
    e = a.e
    ools = []
    e("s_cmp_ge_u32 s2, 256", "s_cbranch_scc1 F_end")
    e("s_load_dwordx16 s[36:51], s[0:1], 0")
    e("s_load_dwordx2 s[86:87], s[0:1], 80")
    e("s_load_dwordx2 s[20:21], s[0:1], 64")
    if STAMP: e("v_mov_b32 v255, 0")
    stamp(a, 30, True); stamp(a, 0)
    e("v_lshrrev_b32 v1, 6, v0", "v_and_b32 v0, 63, v0")
    e("v_readfirstlane_b32 s24, v1")
    if 'nopf' not in OPT:
        e("s_getpc_b64 s[96:97]")
        a.lab("F_pc")
        e("s_lshr_b32 s56, s2, 3", "s_lshl_b32 s57, s24, 5", "s_add_u32 s56, s56, s57", "s_lshl_b32 s56, s56, 10",
          "s_cmp_lt_u32 s56, F_codeend-F_pc-1024", "s_cbranch_scc0 F_nopf",
          "v_lshl_add_u32 v5, v0, 4, s56", "global_load_dwordx4 v[196:199], v5, s[96:97]")
        a.lab("F_nopf")
    e("s_and_b32 s88, s2, 7", "s_lshr_b32 s89, s2, 3", "s_lshr_b32 s56, s88, 1", "s_lshl_b32 s56, s56, 2",
      "s_and_b32 s57, s89, 3", "s_add_u32 s25, s56, s57", "s_lshr_b32 s58, s89, 2", "s_and_b32 s59, s88, 1")
    e("s_lshl_b32 s56, s56, 1", "s_and_b32 s57, s89, 7", "s_add_u32 s90, s56, s57",
      "s_lshl_b32 s56, s59, 2", "s_lshr_b32 s57, s89, 3", "s_add_u32 s91, s56, s57")
    e("v_and_b32 v1, 15, v0", "v_lshrrev_b32 v2, 4, v0", "v_lshrrev_b32 v3, 3, v0", "v_and_b32 v4, 7, v0")
    e(f"s_mov_b32 s6, {X_SZ}", f"s_mov_b32 s7, {SRD3}", f"s_mov_b32 s11, {SRD3}", f"s_mov_b32 s15, {SRD3}", f"s_mov_b32 s19, {SRD3}",
      f"s_mov_b32 s22, {X_SZ}", f"s_mov_b32 s23, {SRD3}")
    e("s_lshl_b32 s60, s25, 2", "s_add_u32 s60, s60, s24", "s_mul_i32 s61, s60, 1280", "s_lshl_b32 s34, s24, 12")
    e("s_mul_i32 s94, s91, 245760", "s_mul_i32 s56, s24, 61440", "s_add_u32 s94, s94, s56")
    e(f"v_mov_b32 v27, {EPO}")
    e("s_sub_u32 s3, s2, 64")
    if 'dff' in OPT:
        e("s_cmp_ge_u32 s58, 2", "s_cbranch_scc1 K1_g1")
        g1_i0 = len(a.L)
        a.lab("K1_g1")
    else:
        e("s_cmp_lt_u32 s58, 2", "s_cbranch_scc1 K1_dft")
    XV, WV, WA, XA0, XA1 = 8, 12, 16, 24, 25
    NV, W2R, PA, PD = 26, 254, 29, 30
    ACC, CS, SUM, SQ, ONES = 32, 96, 104, 112, 120
    A0, B0, A1, B1 = 124, 156, 164, 196
    T = 204
    PF, PL, PG, PW, PR = 164, 180, 204+16, 204+17, 204+18
    e("s_mul_i32 s26, s59, 6", "s_add_u32 s26, s26, s58", "s_sub_u32 s26, s26, 2")
    e("v_xor_b32 v5, v4, v2", "v_lshlrev_b32 v5, 4, v5")
    e("v_mov_b32 v7, 81920", "v_mul_u32_u24 v6, v7, v3")
    e("v_add3_u32 v6, v6, v5, s61")
    e(f"v_mov_b32 v{XV}, v6")
    e(f"v_xor_b32 v7, 64, v6")
    e(f"v_add_u32 v{XV+1}, {8*81920-1024}, v7")
    e(f"v_add_u32 v{XV+2}, {16*81920-2048}, v6")
    e(f"v_add_u32 v{XV+3}, {24*81920-3072}, v7")
    e("s_lshl_b32 s62, s24, 4", "v_add_u32 v5, s62, v2", "v_mul_u32_u24 v5, 3072, v5")
    e("v_lshlrev_b32 v6, 1, v2", "v_xor_b32 v6, v6, v1", "v_lshlrev_b32 v6, 4, v6")
    e("s_lshl_b32 s62, s26, 8", "v_add3_u32 v5, v5, v6, s62")
    e(f"v_mov_b32 v{WV}, v5", "v_xor_b32 v6, 128, v5")
    e(f"v_add_u32 v{WV+1}, {8*3072-1024}, v6")
    e(f"v_add_u32 v{WV+2}, {4*3072-2048}, v5")
    e(f"v_add_u32 v{WV+3}, {12*3072-3072}, v6")
    e("s_mul_i32 s56, s3, 2185", "s_lshr_b32 s56, s56, 16")
    e("s_mul_i32 s57, s56, 30", "s_sub_u32 s57, s3, s57")
    e("s_lshl_b32 s93, s56, 9", "s_lshl_b32 s62, s57, 4", "s_add_u32 s93, s93, s62", f"s_add_u32 s93, s93, {FL_W}")
    e("s_lshl_b32 s57, s57, 2", "s_add_u32 s57, s57, s24")
    e("s_mul_i32 s62, s57, 13108", "s_lshr_b32 s62, s62, 16")
    e("s_mul_i32 s63, s62, 5", "s_sub_u32 s63, s57, s63")
    e("s_mul_i32 s95, s62, 81920", "s_mul_i32 s57, s56, 320", "s_add_u32 s95, s95, s57", "s_lshl_b32 s57, s63, 6", "s_add_u32 s95, s95, s57")
    e("s_mul_i32 s56, s56, 491520", "s_mul_i32 s62, s62, 10240", "s_add_u32 s56, s56, s62")
    e("s_lshl_b32 s63, s63, 11")
    e(f"s_add_u32 s57, s63, {245760-5120}", "s_cmp_ge_u32 s63, 5120", "s_cselect_b32 s98, s57, s63", "s_add_u32 s98, s98, s56")
    e("s_add_u32 s63, s63, 1024", f"s_add_u32 s57, s63, {245760-5120}", "s_cmp_ge_u32 s63, 5120", "s_cselect_b32 s99, s57, s63", "s_add_u32 s99, s99, s56")
    e(f"v_lshrrev_b32 v5, 2, v0", "v_and_b32 v6, 3, v0", "v_mul_u32_u24 v7, 1280, v5", f"v_lshl_add_u32 v{PG}, v6, 4, v7")
    e("s_cmp_lt_u32 s3, 120", "s_cselect_b32 s92, 2, 99", "s_cmp_eq_u32 s24, 0", "s_cselect_b32 s92, s92, 99")
    e("s_waitcnt lgkmcnt(0)")
    stamp(a, 1)
    e("global_load_dword v26, v27, s[86:87] sc1")
    e("s_mov_b32 s4, s36", "s_mov_b32 s5, s37", "s_mov_b32 s8, s48", "s_mov_b32 s9, s49", f"s_mov_b32 s10, {W1_SZ}")
    e("s_mov_b32 s16, s50", "s_mov_b32 s17, s51", f"s_mov_b32 s18, {W2_SZ}")
    e("s_cmp_ge_u32 s3, 120", "s_cbranch_scc1 G1_nopre1")
    for n in range(4):
        e(f"buffer_load_dwordx4 {vr(PL+4*n,4)}, v{PG}, s[16:19], s95 offen")
        if n < 3: e("s_add_u32 s95, s95, 20480")
    a.lab("G1_nopre1")
    def g1_dma(m0x, m0w):
        g = []
        g.append([f"s_add_u32 m0, {m0x[0]}, {m0x[1]}", "s_nop 0", f"buffer_load_dwordx4 v{XV}, s[4:7], s28 offen lds"])
        for j in range(1, 4): g.append([f"buffer_load_dwordx4 v{XV+j}, s[4:7], s28 offen offset:{1024*j} lds"])
        g.append([f"s_add_u32 m0, {m0w[0]}, {m0w[1]}", "s_nop 0", f"buffer_load_dwordx4 v{WV}, s[8:11], s29 offen lds"])
        for j in range(1, 4): g.append([f"buffer_load_dwordx4 v{WV+j}, s[8:11], s29 offen offset:{1024*j} lds"])
        return g
    e("s_mov_b32 s28, 0", "s_mov_b32 s29, 0", "s_add_u32 s35, s34, 16384")
    def g1_st(st):
        gs = g1_dma(("s34", (st&3)*32768), ("s35", (st&3)*32768))
        gs[-1] = gs[-1] + ["s_add_u32 s28, s28, 128", "s_add_u32 s29, s29, 196608"]
        return gs
    dm = g1_st(0) + g1_st(1)
    S = A(); se = S.e
    se(f"v_lshrrev_b32 v5, 1, v1", "v_xor_b32 v5, v5, v2", "v_lshlrev_b32 v5, 4, v5")
    se(f"v_lshl_add_u32 v5, v1, 7, v5", f"v_add_u32 v{XA0}, s34, v5", f"v_xor_b32 v{XA1}, 64, v{XA0}")
    se("v_lshrrev_b32 v5, 2, v1", "v_and_b32 v6, 1, v2", "v_lshl_add_u32 v5, v6, 2, v5")
    se("v_lshrrev_b32 v6, 1, v2", "v_lshl_add_u32 v6, v6, 4, v5")
    se("v_lshlrev_b32 v6, 8, v6", "v_and_b32 v7, 3, v1", "v_lshl_add_u32 v6, v7, 3, v6", "v_add_u32 v6, 16384, v6")
    for t in range(8):
        se("s_lshl_b32 s62, s24, 1", f"s_add_u32 s62, s62, {t}", "s_and_b32 s62, s62, 7",
           "v_xor_b32 v7, s62, v5", f"v_lshl_add_u32 v{WA+t}, v7, 5, v6")
    lane_masks(S, T)
    for r in range(ONES, ONES+4): se(f"v_mov_b32 v{r}, 0x3f803f80")
    common_setup(S, W2R, PA, PW, PR)
    L = S.L; k = (len(L) + len(dm) - 5) // (len(dm) - 4)
    pos = 0
    for gi, g in enumerate(dm):
        e(*g)
        if gi >= 4:
            e(*L[pos:pos+k]); pos += k
    e(*L[pos:])
    PFN = 3 if ('pfx' in OPT or 'pfxg' in OPT) else 0
    PFX['G1'] = PFN
    if PFN:
        e("s_sub_u32 s56, s58, 2", "s_lshl_b32 s56, s56, 2", "s_add_u32 s56, s56, s24", "s_lshl_b32 s56, s56, 6", "s_lshl_b32 s57, s25, 2", "s_add_u32 s56, s56, s57", "s_mul_i32 s56, s56, 1280")
        e("v_min_u32 v5, 9, v1", "v_lshlrev_b32 v5, 7, v5", "v_mad_u32_u24 v5, v2, 1280, v5" .replace("1280", "s57"), )
        a.L.insert(len(a.L)-1, "s_movk_i32 s57, 1280")
        e("buffer_load_dword v28, v5, s[4:7], s56 offen")
        e("s_and_b32 s56, s25, 3", "s_mul_i32 s56, s56, 160", "s_mul_i32 s57, s24, 40", "s_add_u32 s56, s56, s57", "s_mul_i32 s56, s56, 3072", "s_lshl_b32 s57, s26, 8", "s_add_u32 s56, s56, s57")
        e("v_lshrrev_b32 v5, 1, v0", "v_mul_u32_u24 v5, 3072, v5", "v_and_b32 v6, 1, v0", "v_lshl_add_u32 v5, v6, 7, v5")
        e("buffer_load_dword v28, v5, s[8:11], s56 offen", f"s_add_u32 s56, s56, {8*3072}", "buffer_load_dword v28, v5, s[8:11], s56 offen")
    stamp(a, 2)
    e(f"s_waitcnt vmcnt({16+PFN})")
    nonce_calc(a, 26)
    e("s_mov_b32 s16, s86", "s_mov_b32 s17, s87", f"s_add_u32 s16, s16, {W2T_OFF}", "s_addc_u32 s17, s17, 0", f"s_mov_b32 s18, {W2T_SZ}")
    e("s_cmp_ge_u32 s3, 120", "s_cbranch_scc1 G1_nopre2")
    for n in range(4): e(f"ds_write_b128 v{PW}, {vr(PL+4*n,4)} offset:{16*80*n}")
    for k2 in range(2):
        for nt in range(2):
            for hf in range(2):
                e(f"ds_read_b64_tr_b16 {vr(PF+8*k2+4*nt+2*hf,2)}, v{PR} offset:{k2*32*80+hf*16*80+nt*32}")
    e("v_lshlrev_b32 v5, 4, v0", "s_waitcnt lgkmcnt(0)")
    for k2 in range(2):
        for nt in range(2):
            e(f"buffer_store_dwordx4 {vr(PF+8*k2+4*nt,4)}, v5, s[16:19], s{98+nt} offen offset:{0} sc1" if k2 == 0 else
              f"buffer_store_dwordx4 {vr(PF+8*k2+4*nt,4)}, v5, s[16:19], s{98+nt} offen offset:{0} sc1")
        if k2 == 0: e("s_add_u32 s98, s98, 5120", "s_add_u32 s99, s99, 5120")
    e(f"s_waitcnt vmcnt({12+PFN})", "s_branch G1_pre_done")
    a.lab("G1_nopre2")
    e(f"s_waitcnt vmcnt({8+PFN})")
    a.lab("G1_pre_done")
    def g1_mf(Ab, Bb, mfma=mfma):
        m = []
        for t in range(8):
            for mt in range(2): m.append(mfma(ACC + (t*2+mt)*4, Ab + 4*t, Bb + 4*mt))
            if t < 2: m.append(mfma(CS + 4*t, Ab + 4*t, ONES))
            if t in (2, 3): m.append(mfma(SUM + 4*(t-2), ONES, Bb + 4*(t-2)))
            if t in (4, 5): m.append(mfma(SQ + 4*(t-4), Bb + 4*(t-4), Bb + 4*(t-4)))
        return m
    def g1_rd(Ab, Bb, xa, kk):
        r = []
        for mt in range(2): r.append(f"ds_read_b128 {vr(Bb+4*mt,4)}, v{xa} offset:{2048*mt}")
        for t in range(8):
            for hf in range(2): r.append(f"ds_read_b64_tr_b16 {vr(Ab+4*t+2*hf,2)}, v{WA+t} offset:{kk*8192+hf*2048}")
        return r
    e("s_barrier")
    stamp(a, 3)
    e(*g1_rd(A0, B0, XA0, 0))
    e("s_waitcnt lgkmcnt(0)")
    w2l = W2L(W2R)
    ool = k1_main(a, "G1", 32768, g1_mf(A0, B0), g1_mf(A1, B1), g1_rd(A1, B1, XA1, 1), g1_rd(A0, B0, XA0, 0),
            [WA+t for t in range(8)] + [XA0, XA1], g1_dma(("s30", "s34"), ("s30", "s35")), 8, 196608, w2l, (PA, PD), g1_mf(A0, B0, mfma0), g1_st)
    ools.append(ool)
    def sig(b):
        b.lab("G1_sig")
        b.e("v_mov_b32 v5, s93", f"v_mov_b32 v6, {NONCE}", "s_mov_b64 exec, 1", "global_store_dword v5, v6, s[86:87] sc1", "s_mov_b64 exec, -1", "s_branch G1_sigd")
    ools.append(sig)
    stamp(a, 4)
    E = A(); ee = E.e
    ee("s_nop 7", "s_nop 7")
    ee("s_lshl_b32 s62, s24, 7", "s_add_u32 s62, s62, 131072")
    ee(f"v_lshl_add_u32 v5, v2, 4, s62")
    ee(f"ds_write_b128 v5, {vr(CS,4)}", f"ds_write_b128 v5, {vr(CS+4,4)} offset:64")
    MB, RS = [T+12, T+13], [T+14, T+15]
    stats_code(E, [SUM, SUM+4], [SQ, SQ+4], T, [(MB[0], RS[0]), (MB[1], RS[1])])
    for mt in range(2): ee(f"v_mul_f32 v{RS[mt]}, {fhex(-LOG2E)}, v{RS[mt]}")
    ee("s_waitcnt lgkmcnt(0)", "s_barrier")
    stamp(E, 11)
    CSR = A0
    for t in range(8):
        ee("s_lshl_b32 s62, s24, 1", f"s_add_u32 s62, s62, {t}", "s_and_b32 s62, s62, 7", "s_lshl_b32 s62, s62, 6", "s_add_u32 s62, s62, 131072",
           f"v_lshl_add_u32 v5, v2, 4, s62", f"ds_read_b128 {vr(CSR+4*t,4)}, v5")
    ee("s_mov_b32 s12, s86", "s_mov_b32 s13, s87", f"s_mov_b32 s14, {H_SZ}")
    ee("s_and_b32 s62, s60, 31", "s_mul_i32 s62, s62, 48", "s_lshl_b32 s63, s26, 2", "s_add_u32 s62, s62, s63", "s_lshl_b32 s62, s62, 2",
       "s_lshr_b32 s63, s25, 3", "s_lshl_b32 s63, s63, 1", "s_add_u32 s62, s62, s63", "s_lshl_b32 s62, s62, 10")
    ee("v_lshlrev_b32 v6, 4, v0")
    ee("s_waitcnt lgkmcnt(0)")
    TT = A1
    stamp(E, 12)
    for u in range(4):
        ee(f"s_add_u32 s63, s24, {u}", "s_and_b32 s63, s63, 3", "s_lshl_b32 s63, s63, 12", "s_add_u32 s63, s63, s62")
        for mt in range(2):
            tb = TT + ((u*2+mt) & 1) * 20
            z = tb; ex = tb + 8; pk = tb + 16
            vals = [(ACC + ((2*u+h)*2+mt)*4 + r, CSR + (2*u+h)*4 + r) for h in range(2) for r in range(4)]
            for k, (ac, cs) in enumerate(vals): ee(f"v_fma_f32 v{z+k}, -v{MB[mt]}, v{cs}, v{ac}")
            for k in range(0, 8, 2): ee(f"v_pk_mul_f32 {vr(z+k,2)}, {vr(z+k,2)}, {vr(RS[mt]&~1,2)} op_sel:[0,{RS[mt]&1}] op_sel_hi:[1,{RS[mt]&1}]")
            for k in range(8): ee(f"v_exp_f32 v{ex+k}, v{z+k}")
            for k in range(0, 8, 2): ee(f"v_pk_add_f32 {vr(ex+k,2)}, {vr(ex+k,2)}, 1.0 op_sel_hi:[1,0]")
            for k in range(8): ee(f"v_rcp_f32 v{ex+k}, v{ex+k}")
            for k in range(0, 8, 2): ee(f"v_pk_mul_f32 {vr(z+k,2)}, {vr(z+k,2)}, {vr(ex+k,2)}")
            for k in range(4): ee(f"v_cvt_pk_bf16_f32 v{pk+k}, v{z+2*k}, v{z+2*k+1}")
            ee(f"buffer_store_dwordx4 {vr(pk,4)}, v6, s[12:15], s63 offen offset:{1024*mt} sc1")
    out, left = merge_safe(E.L, w2l.take(PAR['G1'][5]), PAR['G1'][6], start=4)
    e(*out)
    for g in left: e(*g)
    stamp(a, 5)
    rest = w2l.take(60)
    e("s_mul_i32 s56, s26, 22", "s_lshr_b32 s56, s56, 6", "s_mul_i32 s57, s56, 3", "s_sub_u32 s57, s26, s57", "s_lshl_b32 s57, s57, 1",
      "s_lshr_b32 s62, s25, 3", "s_add_u32 s57, s57, s62", "s_lshl_b32 s57, s57, 4", "s_lshl_b32 s56, s56, 7", "s_add_u32 s57, s57, s56",
      "s_and_b32 s56, s25, 7", "s_lshl_b32 s56, s56, 9", "s_add_u32 s57, s57, s56", f"s_add_u32 s93, s57, {FL_H}")
    publish(a, "G1", rest, PAR['G1'][7])
    e("s_branch K2_start")
    if 'dff' in OPT:
        g1_code = a.L[g1_i0:]; del a.L[g1_i0:]
    a.lab("K1_dft")
    XV, DV, XA0, XA1, BA0, BA1 = 8, 12, 17, 18, 19, 20
    NV, W2R, PA, PD = 26, 28, 29, 30
    ACC, SUM, SQ, ONES = 32-8, 104, 112, 120
    ACC = 24
    W2R, PA, PD = 254, 253, 252
    A0, B0, A1, B1 = 124, 132, 172, 180
    WC = 220
    e("s_lshl_b32 s26, s59, 1", "s_add_u32 s26, s26, s58")
    e("v_xor_b32 v5, v4, v2", "v_lshlrev_b32 v5, 4, v5")
    e("v_lshrrev_b32 v6, 2, v3", "v_and_b32 v7, 3, v3", "v_lshl_add_u32 v6, v6, 3, v7")
    e("v_mov_b32 v7, 81920", "v_mul_u32_u24 v6, v7, v6")
    e("v_add3_u32 v6, v6, v5, s61")
    e(f"v_mov_b32 v{XV}, v6", "v_xor_b32 v7, 64, v6")
    e(f"v_add_u32 v{XV+1}, {16*81920-1024}, v7")
    e(f"v_add_u32 v{XV+2}, {4*81920-2048}, v6")
    e(f"v_add_u32 v{XV+3}, {20*81920-3072}, v7")
    e("s_and_b32 s62, s24, 1", "s_lshl_b32 s63, s62, 2", "v_add_u32 v5, s63, v2", "v_xor_b32 v5, v5, v4", "v_lshlrev_b32 v5, 4, v5")
    e("s_mul_i32 s63, s26, 80", "s_lshl_b32 s62, s62, 3", "s_add_u32 s63, s63, s62", "v_add_u32 v6, s63, v3")
    e("v_mov_b32 v7, 1280", "v_mad_u32_u24 v21, v6, v7, v5")
    for j in range(1, 5): e(f"v_add_u32 v{DV+j}, {16*1280*j - (1024*j if j < 4 else 0)}, v21")
    e("v_cmp_eq_u32 vcc, 0, v6", f"v_add_u32 v22, {320*1280}, v21", "s_nop 0", f"v_cndmask_b32 v{DV}, v21, v22, vcc")
    e("v_lshlrev_b32 v5, 18, v1", "v_lshl_add_u32 v5, v2, 4, v5", f"v_add_u32 v6, {16*262144}, v5")
    e("s_mov_b32 s28, 0", "s_mul_i32 s35, s24, 5120", "s_add_u32 s35, s35, 16384")
    e("s_waitcnt lgkmcnt(0)")
    stamp(a, 1)
    e("global_load_dword v23, v27, s[86:87] sc1")
    e("s_mov_b32 s4, s36", "s_mov_b32 s5, s37")
    e("s_cmp_ge_u32 s24, 2", "s_cselect_b32 s8, s44, s42", "s_cselect_b32 s9, s45, s43", f"s_mov_b32 s10, {WD_SZ}")
    def dft_dma(base0, base1):
        g = []
        g.append([f"s_add_u32 m0, {base0[0]}, {base0[1]}", "s_nop 0", f"buffer_load_dwordx4 v{XV}, s[4:7], s28 offen lds"])
        for j in range(1, 4): g.append([f"buffer_load_dwordx4 v{XV+j}, s[4:7], s28 offen offset:{1024*j} lds"])
        g.append([f"s_add_u32 m0, {base1[0]}, {base1[1]}", "s_nop 0", f"buffer_load_dwordx4 v{DV}, s[8:11], s28 offen lds"])
        for j in range(1, 4): g.append([f"buffer_load_dwordx4 v{DV+j}, s[8:11], s28 offen offset:{1024*j} lds"])
        g.append(["s_add_u32 m0, m0, 4096", "s_nop 0", f"buffer_load_dwordx4 v{DV+4}, s[8:11], s28 offen lds"])
        return g
    def dft_st(st):
        gs = dft_dma(("s34", (st&3)*36864), ("s35", (st&3)*36864))
        gs[-1] = gs[-1] + ["s_add_u32 s28, s28, 128"]
        return gs
    dm = dft_st(0)
    dm.append([f"global_load_dwordx4 {vr(WC,4)}, v5, s[38:39]", f"global_load_dwordx4 {vr(WC+4,4)}, v6, s[38:39]",
               f"global_load_dwordx4 {vr(WC+8,4)}, v5, s[40:41]", f"global_load_dwordx4 {vr(WC+12,4)}, v6, s[40:41]"])
    dm += dft_st(1)
    T = 236
    S = A(); se = S.e
    se(f"v_lshrrev_b32 v7, 1, v1", "v_xor_b32 v7, v7, v2", "v_lshlrev_b32 v7, 4, v7")
    se(f"v_lshl_add_u32 v21, v1, 7, v7", f"v_add_u32 v{XA0}, s34, v21", f"v_xor_b32 v{XA1}, 64, v{XA0}")
    se("v_lshrrev_b32 v21, 3, v1", "v_mul_u32_u24 v21, 5120, v21", "v_and_b32 v22, 7, v1", "v_lshl_add_u32 v21, v22, 7, v21")
    se(f"v_add_u32 v21, v21, v7", f"v_add_u32 v{BA0}, 16384, v21", f"v_xor_b32 v{BA1}, 64, v{BA0}")
    for r in range(ONES, ONES+4): se(f"v_mov_b32 v{r}, 0x3f803f80")
    lane_masks(S, T)
    common_setup(S, W2R, PA, None, None)
    L = S.L; k = (len(L) + len(dm) - 11) // (len(dm) - 10)
    pos = 0
    for gi, g in enumerate(dm):
        e(*g)
        if gi >= 10:
            e(*L[pos:pos+k]); pos += k
    e(*L[pos:])
    PFN = 4 if ('pfx' in OPT or 'pfxd' in OPT) else 0
    XF = 'px2' in OPT or 'px3' in OPT
    WF = 'px3' in OPT or 'px4' in OPT
    if PFN: PFN += (3 if XF else 0) + (4 if WF else 0)
    PFX['DF'] = PFN
    if PFN:
        if XF: e("s_lshl_b32 s56, s58, 2", "s_add_u32 s56, s56, s24", "s_lshl_b32 s56, s56, 8")
        else: e("s_add_u32 s56, s58, 6", "s_lshl_b32 s56, s56, 2", "s_add_u32 s56, s56, s24", "s_lshl_b32 s56, s56, 6")
        e("s_lshl_b32 s57, s25, 2", "s_add_u32 s56, s56, s57", "s_mul_i32 s56, s56, 1280")
        e("v_min_u32 v5, 9, v1")
        if 'pxm' in OPT: e("v_max_u32 v5, 3, v5")
        e("v_lshlrev_b32 v5, 7, v5", "s_movk_i32 s57, 1280", "v_mad_u32_u24 v5, v2, s57, v5")
        e("buffer_load_dword v22, v5, s[4:7], s56 offen")
        if XF:
            for j in range(3): e("s_add_u32 s56, s56, 81920", "buffer_load_dword v22, v5, s[4:7], s56 offen")
        e("s_and_b32 s56, s25, 3", "s_mul_i32 s56, s56, 20", "s_mul_i32 s57, s26, 80", "s_add_u32 s56, s56, s57", "s_and_b32 s57, s24, 1", "s_mul_i32 s57, s57, 10", "s_add_u32 s56, s56, s57", "s_mul_i32 s56, s56, 1280")
        e("buffer_load_dword v22, v5, s[8:11], s56 offen", f"s_add_u32 s56, s56, {4*1280}", "buffer_load_dword v22, v5, s[8:11], s56 offen",
          f"s_add_u32 s56, s56, {2*1280}", "buffer_load_dword v22, v5, s[8:11], s56 offen")
        if WF:
            e("s_lshl_b32 s56, s58, 2", "s_and_b32 s57, s25, 3", "s_add_u32 s56, s56, s57", "s_lshl_b32 s56, s56, 2", "s_add_u32 s56, s56, s24",
              "s_mul_i32 s56, s56, 61440", "s_mul_i32 s57, s59, 1536", "s_add_u32 s56, s56, s57")
            e("v_min_u32 v5, 59, v0", "v_mul_u32_u24 v6, 43, v5", "v_lshrrev_b32 v6, 9, v6", "v_mul_u32_u24 v7, 12, v6", "v_sub_u32 v5, v5, v7",
              "v_lshlrev_b32 v5, 7, v5", "v_mul_u32_u24 v6, 3072, v6", "v_add3_u32 v5, v5, v6, s56")
            for j in range(4):
                e("global_load_dword v22, v5, s[48:49]")
                if j < 3: e("v_add_u32 v5, 15360, v5")
    stamp(a, 2)
    e(f"s_waitcnt vmcnt({13+PFN})")
    nonce_calc(a, 23)
    e("s_mov_b32 s16, s86", "s_mov_b32 s17, s87", f"s_add_u32 s16, s16, {W2T_OFF}", "s_addc_u32 s17, s17, 0", f"s_mov_b32 s18, {W2T_SZ}")
    def dacc(p, part, mt): return ACC + ((p*2+part)*2+mt)*4
    def dft_mf(Ab, Bb, mfma=mfma):
        m = []
        for p in range(5):
            for part in range(2):
                for mt in range(2): m.append(mfma(dacc(p, part, mt), Ab + 4*mt, Bb + (part*5+p)*4))
            if p < 2: m.append(mfma(SUM + 4*p, ONES, Ab + 4*p))
            if p in (2, 3): m.append(mfma(SQ + 4*(p-2), Ab + 4*(p-2), Ab + 4*(p-2)))
        return m
    def dft_rd(Ab, Bb, xa, ba):
        r = []
        for mt in range(2): r.append(f"ds_read_b128 {vr(Ab+4*mt,4)}, v{xa} offset:{2048*mt}")
        for p in range(5):
            for part in range(2): r.append(f"ds_read_b128 {vr(Bb+(part*5+p)*4,4)}, v{ba} offset:{part*10240+p*1024}")
        return r
    e("s_barrier")
    stamp(a, 3)
    e(*dft_rd(A0, B0, XA0, BA0))
    e("s_waitcnt lgkmcnt(0)")
    w2l = W2L(W2R)
    ool = k1_main(a, "DF", 36864, dft_mf(A0, B0), dft_mf(A1, B1), dft_rd(A1, B1, XA1, BA1), dft_rd(A0, B0, XA0, BA0),
            [XA0, XA1, BA0, BA1], dft_dma(("s30", "s34"), ("s30", "s35")), 9, 0, w2l, (PA, PD), dft_mf(A0, B0, mfma0), dft_st)
    ools.append(ool)
    stamp(a, 4)
    E = A(); ee = E.e
    ee("s_nop 7", "s_nop 7")
    MB, RS = [T+12, T+13], [T+14, T+15]
    stats_code(E, [SUM, SUM+4], [SQ, SQ+4], T, [(MB[0], RS[0]), (MB[1], RS[1])])
    RR = A0
    ee("v_lshlrev_b32 v5, 4, v2")
    for mt in range(2):
        for r in range(4): ee(f"v_add_u32 v6, {4*r}, v5", f"ds_bpermute_b32 v{RR+mt*4+r}, v6, v{RS[mt]}")
    for k in range(8): ee(f"v_xor_b32 v{WC+16+k}, 0x80008000, v{WC+8+k}")
    ee("s_waitcnt lgkmcnt(0)")
    stamp(E, 11)
    PK = B0
    for p in range(5):
        for part in range(2):
            for mt in range(2):
                ac = dacc(p, part, mt)
                for r in range(0, 4, 2): ee(f"v_pk_mul_f32 {vr(ac+r,2)}, {vr(ac+r,2)}, {vr(RR+mt*4+r,2)}")
            for mt in range(2):
                ac = dacc(p, part, mt)
                for h in range(2): ee(f"v_cvt_pk_bf16_f32 v{PK+8*p+4*part+2*mt+h}, v{ac+2*h}, v{ac+2*h+1}")
    ee("s_nop 1")
    def ud(p, nt, c): return ACC + p*16 + nt*8 + 4*c
    mm = []
    for p in range(5):
        aa, bb = PK+8*p, PK+8*p+4
        for nt in range(2):
            mm.append(mfma0(ud(p, nt, 0), aa, WC + 4*nt)); mm.append(mfma0(ud(p, nt, 1), aa, WC + 8 + 4*nt))
        for nt in range(2):
            mm.append(mfma(ud(p, nt, 0), bb, WC + 16 + 4*nt)); mm.append(mfma(ud(p, nt, 1), bb, WC + 4*nt))
    LA, GA = B1, B1 + 10
    ee("s_movk_i32 s56, 1296", "s_mov_b32 s57, 81920", "s_lshl_b32 s63, s24, 3")
    ad = []
    for i in range(10):
        ad += [[f"v_add_u32 v5, {64*i}, v0", "v_mul_u32_u24 v6, 205, v5"], ["v_lshrrev_b32 v6, 14, v6", "v_mul_u32_u24 v7, 80, v6"],
               ["v_sub_u32 v5, v5, v7", "v_lshlrev_b32 v5, 4, v5", "v_add_u32 v6, s63, v6"],
               [f"v_mad_u32_u24 v{LA+i}, v6, s56, v5", f"v_mad_u32_u24 v{GA+i}, v6, s57, v5"]]
    ee(*interleave(mm, ad, start=0, per=1))
    ee(f"s_mov_b32 s14, {U_SZ}", "s_mov_b32 s12, s86", "s_mov_b32 s13, s87")
    ee(f"s_add_u32 s12, s12, {U_OFF}", "s_addc_u32 s13, s13, 0")
    ee("s_mul_i32 s62, s26, 20480", "s_mul_i32 s63, s25, 1280", "s_add_u32 s62, s62, s63")
    ee("s_mul_i32 s63, s24, 320", "v_mul_u32_u24 v5, 1296, v1", "v_lshl_add_u32 v5, v2, 4, v5", "v_add_u32 v5, s63, v5")
    ee("s_nop 7")
    stamp(E, 12)
    k = 0
    for p in range(5):
        for nt in range(2):
            tb = B1 + 20 + (k % 4) * 4; k += 1
            re, im = ud(p, nt, 0), ud(p, nt, 1)
            ee(f"v_cvt_pk_bf16_f32 v{tb}, v{re}, v{re+1}", f"v_cvt_pk_bf16_f32 v{tb+1}, v{re+2}, v{re+3}",
               f"v_cvt_pk_bf16_f32 v{tb+2}, v{im}, v{im+1}", f"v_cvt_pk_bf16_f32 v{tb+3}, v{im+2}, v{im+3}")
            ee(f"ds_write_b128 v5, {vr(tb,4)} offset:{nt*20736+p*64}")
    ee("s_waitcnt lgkmcnt(0)", "s_barrier")
    for i in range(10): ee(f"ds_read_b128 {vr(PK+4*i,4)}, v{LA+i}")
    for i in range(10):
        ee(f"s_waitcnt lgkmcnt({9-i})", f"buffer_store_dwordx4 {vr(PK+4*i,4)}, v{GA+i}, s[12:15], s62 offen sc1")
    out, left = merge_safe(E.L, w2l.take(PAR['DF'][5]), PAR['DF'][6], start=4)
    e(*out)
    for g in left: e(*g)
    stamp(a, 5)
    rest = w2l.take(60)
    e("s_lshl_b32 s57, s26, 4", "s_add_u32 s57, s57, s25", "s_lshl_b32 s57, s57, 4", f"s_add_u32 s93, s57, {FL_U}")
    publish(a, "DF", rest, PAR['DF'][7])
    a.lab("K2_start")
    from gen2k2 import gen_k2f
    gen_k2f(a, ools, stamp, stamp_out)
    a.lab("F_end")
    e("s_endpgm")
    if 'dff' in OPT: a.L += g1_code
    for o in ools: o(a)
    a.lab("F_codeend")

def merge_safe(main, fill, every, start=0):
    out = []; fi = 0; cnt = 0
    for i, m in enumerate(main):
        out.append(m)
        if i >= start:
            cnt += 1
            nxt = main[i+1] if i+1 < len(main) else ""
            if cnt >= every and fi < len(fill) and not nxt.startswith(("s_addc", "s_cselect", "s_cbranch", "v_cndmask")):
                out += fill[fi]; fi += 1; cnt = 0
    return out, fill[fi:]

def nonce_calc(a, v):
    a.e("s_nop 0", f"v_readfirstlane_b32 {NONCE}, v{v}", "s_nop 3", f"s_mul_i32 {NONCE}, {NONCE}, 0x9E3779B1", f"s_add_u32 {NONCE}, {NONCE}, 0x7F4A7C15")

def common_setup(S, W2R, PA, PW, PR):
    se = S.e
    se(f"v_lshlrev_b32 v{W2R}, 4, v0")
    se("s_lshr_b32 s62, s91, 1", "s_lshl_b32 s62, s62, 9", f"s_add_u32 s62, s62, {FL_W}", f"v_lshl_add_u32 v{PA}, v0, 4, s62")
    if PW is not None:
        se("s_mul_i32 s62, s24, 5120", "s_add_u32 s62, s62, 131072")
        se("v_lshrrev_b32 v7, 2, v0", "v_mul_u32_u24 v7, 80, v7", "v_and_b32 v6, 3, v0", "v_lshl_add_u32 v7, v6, 4, v7", f"v_add_u32 v{PW}, s62, v7")
        se("v_lshrrev_b32 v7, 2, v1", "v_lshl_add_u32 v7, v2, 2, v7", "v_mul_u32_u24 v7, 80, v7", "v_lshl_add_u32 v7, v6, 3, v7", f"v_add_u32 v{PR}, s62, v7")

def publish(a, name, rest, npre):
    e = a.e
    from gen2k2 import k2_setup
    nrest = min(npre, len(rest))
    for g in rest[:nrest]: e(*g)
    import gen2k2
    early_ws = (name == "DF") != ('wsx' in OPT)
    if 'wsa' in OPT: early_ws = True
    k2_setup(a, early_ws)
    stamp(a, 13)
    e(f"s_waitcnt vmcnt({nrest + (8 if early_ws else 0)})")
    stamp(a, 14)
    e("s_barrier")
    stamp(a, 6)
    e("s_cmp_lg_u32 s24, 0", f"s_cbranch_scc1 {name}_pubd")
    e("v_mov_b32 v5, s93", f"v_mov_b32 v6, {NONCE}", "s_mov_b64 exec, 1", "global_store_dword v5, v6, s[86:87] sc1", "s_mov_b64 exec, -1")
    a.lab(f"{name}_pubd")
    if not early_ws: gen2k2.ws_loads(a)
    for g in rest[nrest:]: e(*g)

def build():
    lab = "f_kernel" if 'list' in OPT else KN + "_kernel"
    out = HEADER
    if 'list' in OPT: out += f"; @launch kernel={lab} grid=(256,1,1) block=(256,1,1) lds=160768\n"
    else: out += f"; @launch grid=(256,1,1) block=(256,1,1) lds=160768\n"
    out += '.amdgcn_target "amdgcn-amd-amdhsa--gfx950"\n.text\n'
    a = A(); gen_f(a)
    out += f".globl {lab}\n.p2align 8\n.type {lab},@function\n{lab}:\n" + a.text()
    out += '.section .rodata,"a"\n.p2align 6\n' + gen.kernel_desc(lab, 256, 256, 512)
    return out

if __name__ == "__main__":
    out = sys.argv[1]
    if len(sys.argv) > 2:
        for o in sys.argv[2].split(','):
            if o == 'st': STAMP = True
            elif o.startswith('US='):
                import gen2k2; gen2k2.USTEP = int(o[3:])
            elif o.startswith('G1=') or o.startswith('DF='): PAR[o[:2]] = [int(x) for x in o[3:].split('.')]
            else: OPT.add(o)
    import gen2k2
    gen2k2.OPT = OPT; gen2k2.STAMP = STAMP
    open(out, "w").write(build())
```
